```python
import torch

def _softmax(x, axis=-1):
    return torch.softmax(x, dim=axis)
def _gelu(x):
    return torch.nn.functional.gelu(x, approximate="tanh")
def _silu(x):
    return torch.nn.functional.silu(x)
def _sigmoid(x):
    return torch.sigmoid(x)
def _layernorm(x, axis=-1, eps=1e-5):
    m = x.mean(dim=axis, keepdim=True)
    v = x.var(dim=axis, keepdim=True, unbiased=False)
    return (x - m) / torch.sqrt(v + eps)
def _scatter_add(tgt, idx, src, axis=0):
    return tgt.clone().index_add_(axis, idx, src)
def _segment_sum(src, seg, n):
    out = torch.zeros((n,) + src.shape[1:], dtype=src.dtype)
    return out.index_add_(0, seg, src)
def _pad(x, pw):
    flat = tuple(v for pair in reversed(pw) for v in pair)
    return torch.nn.functional.pad(x, flat)

kernel_name = 'standalone__gqa_block_cached__near_ridge'

def setup_inputs():

    _w = (lambda a: (lambda t: t.to(torch.bfloat16) if t.is_floating_point() else t)(torch.as_tensor(a)))
    B, Sq, D = 8, 112, 640
    Hq, Hkv, Sk, Dh = 32, 32, 512, 128
    assert Hq % Hkv == 0, (Hq, Hkv)
    return {
        "x": _w((lambda *s: torch.randn(*s, dtype=torch.bfloat16) * 0.8)(B, Sq, D)),
        "k_cache": _w((lambda *s: torch.randn(*s, dtype=torch.bfloat16) * 0.8)(B, Hkv, Sk, Dh)),
        "v_cache": _w((lambda *s: torch.randn(*s, dtype=torch.bfloat16) * 0.05)(B, Hkv, Sk, Dh)),
        "wq": _w((lambda *s: torch.randn(*s, dtype=torch.bfloat16) * 0.8)(D, Hq * Dh) * (D ** -0.5)),
        "wo": _w((lambda *s: torch.randn(*s, dtype=torch.bfloat16) * 0.05)(Hq * Dh, D) * ((Hq * Dh) ** -0.5)),
    }

def reference(x, k_cache, v_cache, wq, wo):
    B, Sq, D = x.shape
    Hq, Dh = 32, 128
    Hkv = k_cache.shape[1]
    rep = Hq // Hkv
    q = (lambda x, *d: x.permute(*d))((x @ wq).reshape(B, Sq, Hq, Dh), 0, 2, 1, 3)
    k = (lambda x, n, axis: torch.repeat_interleave(x, n, dim=axis))(k_cache, rep, axis=1)
    v = (lambda x, n, axis: torch.repeat_interleave(x, n, dim=axis))(v_cache, rep, axis=1)
    scores = torch.einsum("bhqd,bhkd->bhqk", q, k) * (Dh ** -0.5)
    p = _softmax(scores, axis=-1)
    o = torch.einsum("bhqk,bhkd->bhqd", p, v)
    return (lambda x, *d: x.permute(*d))(o, 0, 2, 1, 3).reshape(B, Sq, Hq * Dh) @ wo
```

```python
def vr(i, n=1):
    return f"v{i}" if n == 1 else f"v[{i}:{i+n-1}]"


def sr(i, n=1):
    return f"s{i}" if n == 1 else f"s[{i}:{i+n-1}]"


def rng(i, n=1):
    return set(range(i, i + n))


class Rec:
    __slots__ = ("kind", "vw", "vr", "sw", "sr", "ws", "srcc", "dst", "m0w")

    def __init__(self, kind, vw, vr_, sw, sr_, ws=1, srcc=None, dst=None, m0w=False):
        self.kind = kind
        self.vw = vw
        self.vr = vr_
        self.sw = sw
        self.sr = sr_
        self.ws = ws
        self.srcc = srcc
        self.dst = dst
        self.m0w = m0w


class Gen:
    def __init__(self):
        self.lines = []
        self.hist = []
        self.dsq = []
        self.cond = False
        self.nlabel = 0

    def text(self, s):
        self.lines.append(s)

    def label(self, base="L"):
        self.nlabel += 1
        return f".{base}{self.nlabel}"

    def _need(self, kind, vw, vr_, sw, sr_, srcc, dst, lds_dma, permlane, rdlane):
        need = 0
        dist = 0
        for p in reversed(self.hist):
            req = 0
            if p.kind in ("valu", "trans"):
                if kind in ("mfma",) and (p.vw & vr_):
                    req = max(req, 2)
                if p.kind == "trans" and kind in ("valu", "mfma", "vmem", "ds") and (p.vw & vr_):
                    req = max(req, 1)
                if permlane and (p.vw & (vr_ | vw)):
                    req = max(req, 2)
                if rdlane and (p.vw & vr_):
                    req = max(req, 1)
                if p.sw:
                    if kind in ("vmem",) and (p.sw & sr_):
                        req = max(req, 5)
                    if kind in ("valu", "trans", "mfma") and (p.sw & sr_):
                        req = max(req, 2)
                    if kind == "salu" and (p.sw & sr_):
                        req = max(req, 4)
            if p.kind == "mfma":
                npass = p.m0w
                t_ab = {8: 12, 4: 8}[npass]
                t_c = {8: 10, 4: 6}[npass]
                t_war = {8: 7, 4: 3}[npass]
                if kind == "mfma":
                    if srcc is not None and (p.vw & set(range(srcc[0], srcc[0] + srcc[1]))):
                        if not (p.dst == srcc):
                            req = max(req, t_c)
                    ab = vr_ - (set(range(srcc[0], srcc[0] + srcc[1])) if srcc else set())
                    if p.vw & ab:
                        req = max(req, t_ab)
                    if (p.vw & vw) and not (p.dst == dst):
                        req = max(req, t_ab)
                else:
                    if p.vw & (vr_ | vw):
                        req = max(req, t_ab)
                    if kind in ("valu", "trans") and p.srcc is not None:
                        if set(range(p.srcc[0], p.srcc[0] + p.srcc[1])) & vw:
                            req = max(req, t_war)
            if p.kind == "salu":
                if lds_dma and p.m0w:
                    req = max(req, 1)
            if p.kind == "vmem" and p.srcc == "store":
                if kind in ("valu", "trans") and (p.vr & vw):
                    req = max(req, 2)
                elif p.vr & vw:
                    req = max(req, 1)
            if req > dist:
                need = max(need, req - dist)
            dist += p.ws
            if dist >= 20:
                break
        return need

    def nop(self, n):
        while n > 0:
            k = min(n, 16)
            self.text(f"  s_nop {k-1}")
            self.hist.append(Rec("nop", set(), set(), set(), set(), ws=k))
            n -= k

    def _ds_wait_for(self, regs):
        idx = -1
        for i, d in enumerate(self.dsq):
            if d & regs:
                idx = i
        if idx >= 0:
            n = len(self.dsq) - 1 - idx
            n = min(n, 15)
            self.text(f"  s_waitcnt lgkmcnt({n})")
            self.hist.append(Rec("wait", set(), set(), set(), set(), ws=1))
            keep = n
            self.dsq = self.dsq[len(self.dsq) - keep:] if keep > 0 else []

    def emit(self, txt, kind, vw=(), vr_=(), sw=(), sr_=(), srcc=None, dst=None, lds_dma=False,
             permlane=False, rdlane=False, m0w=False, npass=None, store=False):
        vw = set(vw)
        vr_ = set(vr_)
        sw = set(sw)
        sr_ = set(sr_)
        self._ds_wait_for(vw | vr_)
        n = self._need(kind, vw, vr_, sw, sr_, srcc, dst, lds_dma, permlane, rdlane)
        if n:
            self.nop(n)
        self.text("  " + txt)
        r = Rec(kind, vw, vr_, sw, sr_, ws=(0 if self.cond else 1), srcc=srcc, dst=dst, m0w=m0w)
        if kind == "mfma":
            r.m0w = npass
        if store:
            r.srcc = "store"
        self.hist.append(r)
        if len(self.hist) > 64:
            self.hist = self.hist[-48:]

    @staticmethod
    def _op(o):
        if isinstance(o, tuple):
            t = o[0]
            n = o[2] if len(o) > 2 else 1
            if t == "v":
                return vr(o[1], n), rng(o[1], n), set()
            if t == "s":
                return sr(o[1], n), set(), rng(o[1], n)
        if isinstance(o, float):
            return repr(o), set(), set()
        if isinstance(o, int):
            if -16 <= o <= 64:
                return str(o), set(), set()
            return hex(o & 0xFFFFFFFF), set(), set()
        return str(o), set(), set()

    def valu(self, op, d, *srcs, trans=False, permlane=False, rdlane=False, sdst=False, rmw=False, vcc_r=False, vcc_w=False):
        dt, dv, dsg = self._op(d)
        vr_ = set()
        sr_ = set()
        ts = []
        for s in srcs:
            t, a, b = self._op(s)
            ts.append(t)
            vr_ |= a
            sr_ |= b
        if rmw:
            vr_ |= dv
        sw = set(dsg)
        if vcc_w:
            sw |= {106}
        if vcc_r:
            sr_ |= {106}
        vw = set(dv)
        if permlane:
            vw |= vr_
            vr_ |= dv
        self.emit(f"{op} {dt}, " + ", ".join(ts), "trans" if trans else "valu", vw, vr_, sw, sr_,
                  permlane=permlane, rdlane=rdlane)

    def salu(self, op, d, *srcs):
        dt, _, dsg = self._op(d)
        sr_ = set()
        ts = []
        for s in srcs:
            t, a, b = self._op(s)
            ts.append(t)
            sr_ |= b
        m0w = (dt == "m0")
        self.emit(f"{op} {dt}, " + ", ".join(ts), "salu", sw=dsg, sr_=sr_, m0w=m0w)

    def scmp(self, op, a, b):
        ta, _, sa = self._op(a)
        tb, _, sb = self._op(b)
        self.emit(f"{op} {ta}, {tb}", "salu", sr_=sa | sb)

    def misc(self, txt):
        self.emit(txt, "other")

    def mfma32(self, d, a, b, c):
        vr_ = rng(a, 4) | rng(b, 4)
        if c == "0":
            ct = "0"
            srcc = None
        else:
            ct = vr(c, 16)
            vr_ |= rng(c, 16)
            srcc = (c, 16)
        self.emit(f"v_mfma_f32_32x32x16_bf16 {vr(d,16)}, {vr(a,4)}, {vr(b,4)}, {ct}", "mfma",
                  vw=rng(d, 16), vr_=vr_, srcc=srcc, dst=(d, 16), npass=8)

    def ds_read(self, op, d, n, addr, off=0):
        assert 0 <= off < 65536, off
        o = f" offset:{off}" if off else ""
        self.emit(f"{op} {vr(d,n)}, {vr(addr)}{o}", "ds", vw=rng(d, n), vr_=rng(addr))
        self.dsq.append(rng(d, n))

    def ds_write(self, op, addr, s, n, off=0):
        assert 0 <= off < 65536, off
        o = f" offset:{off}" if off else ""
        self.emit(f"{op} {vr(addr)}, {vr(s,n)}{o}", "ds", vr_=rng(addr) | rng(s, n))
        self.dsq.append(set())

    def dma(self, voff, srd, soff, off=0, flags=""):
        assert 0 <= off < 4096
        o = f" offset:{off}" if off else ""
        st, _, ss = self._op(soff)
        self.emit(f"buffer_load_dwordx4 {vr(voff)}, {sr(srd,4)}, {st} offen{o}{flags} lds", "vmem",
                  vr_=rng(voff), sr_=rng(srd, 4) | ss, lds_dma=True)

    def bload(self, d, n, voff, srd, soff, off=0, flags=""):
        assert 0 <= off < 4096
        o = f" offset:{off}" if off else ""
        st, _, ss = self._op(soff)
        op = {1: "buffer_load_dword", 2: "buffer_load_dwordx2", 4: "buffer_load_dwordx4"}[n]
        self.emit(f"{op} {vr(d,n)}, {vr(voff)}, {sr(srd,4)}, {st} offen{o}{flags}", "vmem",
                  vw=rng(d, n), vr_=rng(voff), sr_=rng(srd, 4) | ss)

    def bstore(self, s, n, voff, srd, soff, off=0, flags=""):
        assert 0 <= off < 4096
        o = f" offset:{off}" if off else ""
        st, _, ss = self._op(soff)
        op = {1: "buffer_store_dword", 2: "buffer_store_dwordx2", 4: "buffer_store_dwordx4"}[n]
        self.emit(f"{op} {vr(s,n)}, {vr(voff)}, {sr(srd,4)}, {st} offen{o}{flags}", "vmem",
                  vr_=rng(s, n) | rng(voff), sr_=rng(srd, 4) | ss, store=(n >= 3))

    def wait(self, vm=None, lgkm=None):
        parts = []
        if vm is not None:
            assert 0 <= vm <= 63
            parts.append(f"vmcnt({vm})")
        if lgkm is not None:
            parts.append(f"lgkmcnt({lgkm})")
            if lgkm == 0:
                self.dsq = []
            else:
                self.dsq = self.dsq[len(self.dsq) - lgkm:] if len(self.dsq) > lgkm else self.dsq
        self.text("  s_waitcnt " + " ".join(parts))
        self.hist.append(Rec("wait", set(), set(), set(), set(), ws=(0 if self.cond else 1)))

    def barrier(self):
        self.text("  s_barrier")
        self.hist.append(Rec("other", set(), set(), set(), set(), ws=1))

    def cond_begin(self, sreg, val):
        assert not self.cond
        self.scmp("s_cmp_lg_u32", ("s", sreg), val)
        self._cl = self.label("C")
        self.emit(f"s_cbranch_scc1 {self._cl}", "other")
        self.cond = True
        self._dsq_saved = list(self.dsq)

    def cond_end(self):
        assert self.cond
        if len(self.dsq) != len(self._dsq_saved) or self.dsq != self._dsq_saved:
            self.wait(lgkm=0)
            self.dsq = self._dsq_saved
        self.cond = False
        self.text(f"{self._cl}:")

    def out(self):
        return "\n".join(self.lines) + "\n"
```

```python
import sys
from gen import Gen, vr, sr, rng

V = lambda i, n=1: ("v", i, n)
S = lambda i, n=1: ("s", i, n)

SLOT = 16384
O_BYTES = 896 * 4096 * 2
PART_OFF = 8 * 1024 * 1024
PART_BYTES = 8 * 896 * 640 * 4 * 8 // 7 * 1
PART_PER_QG = 5 * 4 * 64 * 16
PART_BYTES = 8 * 8 * 4 * 4 * PART_PER_QG

SCALE_LOG2E = (128 ** -0.5) * 1.4426950408889634


def f32hex(x):
    import struct
    return struct.unpack("<I", struct.pack("<f", x))[0]


def srd(g, base, lo, hi, nbytes):
    g.salu("s_mov_b32", S(base), S(lo))
    g.salu("s_and_b32", S(base + 1), S(hi), 0xFFFF)
    g.salu("s_mov_b32", S(base + 2), nbytes)
    g.salu("s_mov_b32", S(base + 3), 0x00020000)


def srd_off(g, base, lo, hi, offreg, nbytes):
    g.salu("s_add_u32", S(base), S(lo), S(offreg))
    g.salu("s_addc_u32", S(base + 1), S(hi), 0)
    g.salu("s_and_b32", S(base + 1), S(base + 1), 0xFFFF)
    g.salu("s_mov_b32", S(base + 2), nbytes)
    g.salu("s_mov_b32", S(base + 3), 0x00020000)


def header(g, name):
    g.text(f".globl {name}")
    g.text(".p2align 8")
    g.text(f".type {name},@function")
    g.text(f"{name}:")


def kd(name, vgpr, sgpr=96):
    return f""".amdhsa_kernel {name}
  .amdhsa_next_free_vgpr {vgpr}
  .amdhsa_next_free_sgpr {sgpr}
  .amdhsa_accum_offset {vgpr}
  .amdhsa_group_segment_fixed_size 0
  .amdhsa_kernarg_size 64
  .amdhsa_user_sgpr_count 2
  .amdhsa_user_sgpr_kernarg_segment_ptr 1
  .amdhsa_system_sgpr_workgroup_id_x 1
.end_amdhsa_kernel
"""


def k1(g, name="attn_kernel"):
    header(g, name)
    end = g.label("END")
    SX, SW, SK, SV, SO = 4, 8, 12, 16, 20
    s_wave, s_role, s_qg, s_b, s_h, s_t0, s_t1, s_wl = 24, 25, 26, 27, 28, 29, 30, 31
    s_c = 32
    g.text("  s_load_dwordx4 s[36:39], s[0:1], 0")
    g.text("  s_load_dwordx4 s[40:43], s[0:1], 16")
    g.text("  s_load_dwordx2 s[44:45], s[0:1], 56")
    g.scmp("s_cmp_ge_u32", S(2), 256)
    g.misc(f"s_cbranch_scc1 {end}")
    vS = 0
    vO = 128
    vQacc = 128
    vQf = 160
    vF = 192
    v_lane = 224
    v_xB = 225
    v_wA = 227
    v_dma = 229
    v_dmaV = 233
    v_kA = 234
    v_vA = 242
    v_m = 246
    v_l = 247
    v_mc = 248
    v_t = 249
    v_t2 = 250
    v_t3 = 251
    v_l2 = 252
    v_oo = 253
    v_ex = 254
    v_g = 255

    g.valu("v_and_b32", V(v_lane), 63, V(0))
    g.valu("v_lshrrev_b32", V(v_t), 6, V(0))
    g.valu("v_readfirstlane_b32", S(s_wave), V(v_t), rdlane=True)
    g.salu("s_lshr_b32", S(s_role), S(s_wave), 2)
    g.salu("s_and_b32", S(s_qg), S(s_wave), 3)
    g.salu("s_lshr_b32", S(s_b), S(2), 5)
    g.salu("s_and_b32", S(s_h), S(2), 31)
    g.salu("s_mov_b32", S(s_c), f32hex(SCALE_LOG2E))
    g.text("  s_waitcnt lgkmcnt(0)")
    srd(g, SX, 36, 37, 8 * 112 * 640 * 2)
    srd(g, SW, 42, 43, 640 * 4096 * 2)
    g.salu("s_lshl_b32", S(s_t0), S(2), 17)
    srd_off(g, SK, 38, 39, s_t0, 131072)
    srd_off(g, SV, 40, 41, s_t0, 131072)
    srd(g, SO, 44, 45, O_BYTES)

    lane = V(v_lane)
    for i in range(5):
        g.valu("v_mov_b32", V(v_dma + i), 0)
    g.cond_begin(s_role, 0)
    g.salu("s_mul_i32", S(s_t0), S(s_b), 112)
    g.salu("s_lshl_b32", S(s_t1), S(s_qg), 5)
    g.salu("s_add_u32", S(s_t0), S(s_t0), S(s_t1))
    g.valu("v_lshrrev_b32", V(v_t), 2, lane)
    g.valu("v_add_u32", V(v_t), S(s_t0), V(v_t))
    g.valu("v_mul_u32_u24", V(v_t), 1280, V(v_t))
    g.valu("v_lshrrev_b32", V(v_t2), 4, lane)
    g.valu("v_xor_b32", V(v_t2), V(v_t2), lane)
    g.valu("v_and_b32", V(v_t2), 3, V(v_t2))
    g.valu("v_lshl_add_u32", V(v_dma + 0), V(v_t2), 4, V(v_t))
    g.valu("v_add_u32", V(v_dma + 1), 16 * 1280 - 1024, V(v_dma + 0))
    g.valu("v_lshrrev_b32", V(v_t), 4, lane)
    g.valu("v_lshlrev_b32", V(v_t2), 2, V(v_t))
    g.valu("v_xor_b32", V(v_t2), V(v_t2), lane)
    g.valu("v_and_b32", V(v_t2), 15, V(v_t2))
    g.salu("s_lshl_b32", S(s_t0), S(s_qg), 3)
    g.valu("v_add_u32", V(v_t), S(s_t0), V(v_t))
    g.valu("v_lshlrev_b32", V(v_t), 13, V(v_t))
    g.valu("v_lshl_add_u32", V(v_t), V(v_t2), 4, V(v_t))
    g.salu("s_lshl_b32", S(s_t0), S(s_h), 8)
    g.valu("v_add_u32", V(v_dma + 2), S(s_t0), V(v_t))
    g.valu("v_add_u32", V(v_dma + 3), 4 * 8192 - 1024, V(v_dma + 2))
    g.cond_end()
    g.cond_begin(s_role, 1)
    g.valu("v_lshrrev_b32", V(v_t), 4, lane)
    for i in range(4):
        g.valu("v_add_u32", V(v_t2), 4 * i, V(v_t))
        g.valu("v_xor_b32", V(v_t2), V(v_t2), lane)
        g.valu("v_and_b32", V(v_t2), 15, V(v_t2))
        g.valu("v_lshlrev_b32", V(v_t2), 4, V(v_t2))
        g.valu("v_lshl_add_u32", V(v_dma + i), V(v_t), 8, V(v_t2))
    g.valu("v_lshlrev_b32", V(v_t2), 2, V(v_t))
    g.valu("v_xor_b32", V(v_t2), V(v_t2), lane)
    g.valu("v_and_b32", V(v_t2), 15, V(v_t2))
    g.valu("v_lshlrev_b32", V(v_t2), 4, V(v_t2))
    g.valu("v_lshl_add_u32", V(v_dmaV), V(v_t), 8, V(v_t2))
    g.cond_end()
    g.salu("s_lshl_b32", S(s_wl), S(s_qg), 12)

    QBASE = 6 * SLOT

    def issue_chunk(c):
        buf = QBASE + (c & 3) * SLOT
        g.cond_begin(s_role, 0)
        g.salu("s_lshl_b32", S(s_t0), S(s_qg), 11)
        g.salu("s_add_u32", "m0", S(s_t0), buf)
        g.salu("s_mov_b32", S(s_t1), c * 64)
        g.dma(v_dma + 0, SX, S(s_t1))
        g.dma(v_dma + 1, SX, S(s_t1), 1024)
        g.salu("s_add_u32", "m0", S(s_t0), buf + 8192)
        g.salu("s_mov_b32", S(s_t1), c * 262144)
        g.dma(v_dma + 2, SW, S(s_t1))
        g.dma(v_dma + 3, SW, S(s_t1), 1024)
        g.cond_end()

    def item_slot(it):
        return {0: 0, 1: 1, 2: 2, 3: 3, 4: 4, 5: 5, 6: 8, 7: 9, 8: 6, 9: 7, 10: 0, 11: 1, 12: 2, 13: 3, 14: 4, 15: 5}[it]

    def issue_item(it, inside=False):
        base = item_slot(it) * SLOT
        if not inside:
            g.cond_begin(s_role, 1)
        g.salu("s_add_u32", "m0", S(s_wl), base)
        g.salu("s_add_u32", S(s_t1), S(s_wl), (it & 7) * SLOT)
        for i in range(4):
            if it < 8:
                g.dma(v_dma + i, SK, S(s_t1), 1024 * i)
            else:
                g.dma(v_dmaV, SV, S(s_t1), 1024 * i)
        if not inside:
            g.cond_end()

    for c in range(4):
        issue_chunk(c)
    g.cond_begin(s_role, 1)
    g.salu("s_mul_i32", S(s_t0), S(s_qg), 280)
    g.valu("v_add_u32", V(v_t), S(s_t0), lane)
    g.salu("s_mul_i32", S(s_t1), S(s_b), 143360)
    g.valu("v_lshlrev_b32", V(v_t), 7, V(v_t))
    for i in range(5):
        g.bload(v_t3, 1, v_t, SX, S(s_t1), 0)
        g.valu("v_add_u32", V(v_t), 64 * 128, V(v_t))
    g.valu("v_lshrrev_b32", V(v_t), 1, lane)
    g.salu("s_mul_i32", S(s_t0), S(s_qg), 160)
    g.valu("v_add_u32", V(v_t), S(s_t0), V(v_t))
    g.valu("v_lshlrev_b32", V(v_t), 13, V(v_t))
    g.valu("v_and_b32", V(v_t2), 1, lane)
    g.valu("v_lshl_add_u32", V(v_t), V(v_t2), 7, V(v_t))
    g.salu("s_lshl_b32", S(s_t1), S(s_h), 8)
    for i in range(5):
        g.bload(v_t3, 1, v_t, SW, S(s_t1), 0)
        g.valu("v_add_u32", V(v_t), 32 * 8192, V(v_t))
    for it in range(6):
        issue_item(it, inside=True)
    g.cond_end()

    l31 = v_t3
    g.valu("v_and_b32", V(v_t), 31, lane)
    g.valu("v_lshrrev_b32", V(v_t2), 5, lane)
    g.salu("s_lshl_b32", S(s_t0), S(s_qg), 5)
    g.valu("v_add_u32", V(v_g), S(s_t0), V(v_t))
    g.valu("v_lshrrev_b32", V(v_ex), 2, V(v_g))
    g.valu("v_and_b32", V(v_ex), 3, V(v_ex))
    g.valu("v_xor_b32", V(v_ex), V(v_ex), V(v_t2))
    g.valu("v_lshlrev_b32", V(v_g), 6, V(v_g))
    g.valu("v_lshl_add_u32", V(v_xB), V(v_ex), 4, V(v_g))
    g.valu("v_add_u32", V(v_xB), QBASE, V(v_xB))
    g.valu("v_xor_b32", V(v_xB + 1), 32, V(v_xB))
    vr_r, vr_col = v_m, v_l
    g.valu("v_lshrrev_b32", V(vr_r), 2, lane)
    g.valu("v_and_b32", V(vr_r), 3, V(vr_r))
    g.valu("v_and_b32", V(vr_col), 1, lane)
    g.valu("v_lshlrev_b32", V(vr_col), 4, V(vr_col))
    g.valu("v_and_b32", V(v_g), 2, lane)
    g.valu("v_lshl_add_u32", V(vr_col), V(v_g), 2, V(vr_col))
    g.valu("v_and_b32", V(v_g), 16, lane)
    g.valu("v_lshl_add_u32", V(vr_col), V(v_g), 1, V(vr_col))
    g.valu("v_lshl_add_u32", V(v_g), V(v_t2), 3, V(vr_r))
    g.valu("v_lshl_add_u32", V(v_g), V(v_g), 8, V(vr_col))
    g.valu("v_add_u32", V(v_g), QBASE + 8192, V(v_g))
    g.salu("s_lshl_b32", S(s_t0), S(s_role), 1)
    for t in range(2):
        g.salu("s_add_u32", S(s_t1), S(s_t0), t)
        g.valu("v_xor_b32", V(v_ex), S(s_t1), V(vr_r))
        g.valu("v_lshl_add_u32", V(v_wA + t), V(v_ex), 6, V(v_g))
    g.valu("v_lshl_add_u32", V(v_g), V(v_t2), 2, V(vr_r))
    g.salu("s_lshl_b32", S(s_t0), S(s_role), 5)
    g.valu("v_add_u32", V(v_g), S(s_t0), V(v_g))
    g.valu("v_lshl_add_u32", V(v_g), V(v_g), 8, V(vr_col))
    for t in range(4):
        g.valu("v_xor_b32", V(v_ex), t, V(vr_r))
        g.valu("v_lshl_add_u32", V(v_vA + t), V(v_ex), 6, V(v_g))
    g.valu("v_add_u32", V(v_g), S(s_t0), V(v_t))
    g.valu("v_and_b32", V(v_ex), 15, V(v_g))
    g.valu("v_xor_b32", V(v_ex), V(v_ex), V(v_t2))
    g.valu("v_lshlrev_b32", V(v_g), 8, V(v_g))
    g.valu("v_lshl_add_u32", V(v_kA), V(v_ex), 4, V(v_g))
    for s in range(1, 8):
        g.valu("v_xor_b32", V(v_kA + s), s << 5, V(v_kA))
    g.salu("s_mul_i32", S(s_t0), S(s_b), 112)
    g.salu("s_lshl_b32", S(s_t1), S(s_qg), 5)
    g.salu("s_add_u32", S(s_t0), S(s_t0), S(s_t1))
    g.valu("v_add_u32", V(v_g), S(s_t0), V(v_t))
    g.valu("v_lshlrev_b32", V(v_g), 13, V(v_g))
    g.valu("v_lshl_add_u32", V(v_g), V(v_t2), 4, V(v_g))
    g.salu("s_lshl_b32", S(s_t0), S(s_h), 8)
    g.salu("s_lshl_b32", S(s_t1), S(s_role), 7)
    g.salu("s_add_u32", S(s_t0), S(s_t0), S(s_t1))
    g.valu("v_add_u32", V(v_oo), S(s_t0), V(v_g))

    def qfr(setn):
        b = setn * 24
        return dict(B=[b, b + 4], A=[[b + 8, b + 12], [b + 16, b + 20]])

    def q_reads(c):
        f = qfr(c & 1)
        off = (c & 3) * SLOT
        for s in range(2):
            g.ds_read("ds_read_b128", f["B"][s], 4, v_xB + s, off)
            for t in range(2):
                for e in range(2):
                    g.ds_read("ds_read_b64_tr_b16", f["A"][s][t] + 2 * e, 2, v_wA + t, off + (16 * s + 4 * e) * 256)

    g.cond_begin(s_role, 0)
    g.wait(vm=12)
    g.cond_end()
    g.barrier()
    q_reads(0)
    NCH = 20
    for c in range(NCH):
        g.wait(lgkm=0)
        if c + 1 < NCH:
            outstanding = min(c + 3, NCH - 1) - (c + 1)
            g.cond_begin(s_role, 0)
            g.wait(vm=4 * outstanding)
            g.cond_end()
            g.barrier()
            if c + 4 < NCH:
                issue_chunk(c + 4)
            q_reads(c + 1)
        f = qfr(c & 1)
        for s in range(2):
            for t in range(2):
                first = (c == 0 and s == 0)
                g.mfma32(vQacc + 16 * t, f["A"][s][t], f["B"][s], "0" if first else vQacc + 16 * t)

    g.salu("s_lshl_b32", S(s_t0), S(s_qg), 13)
    g.salu("s_lshl_b32", S(s_t1), S(s_role), 12)
    g.salu("s_add_u32", S(s_t0), S(s_t0), S(s_t1))
    g.salu("s_add_u32", S(s_t0), S(s_t0), QBASE)
    g.valu("v_lshlrev_b32", V(v_ex), 4, lane)
    g.valu("v_add_u32", V(v_ex), S(s_t0), V(v_ex))
    tmpq = 64
    for t in range(2):
        for u in range(2):
            for j in range(4):
                g.valu("v_cvt_pk_bf16_f32", V(tmpq + 8 * t + 4 * u + j), V(vQacc + 16 * t + 8 * u + 2 * j),
                       V(vQacc + 16 * t + 8 * u + 2 * j + 1))
    for i in range(4):
        g.ds_write("ds_write_b128", v_ex, tmpq + 4 * i, 4, i * 1024)
    g.wait(lgkm=0)
    g.barrier()
    issue_item(6)
    issue_item(7)
    g.salu("s_lshl_b32", S(s_t0), S(s_qg), 13)
    g.salu("s_add_u32", S(s_t0), S(s_t0), QBASE)
    g.valu("v_lshlrev_b32", V(v_ex), 4, lane)
    g.valu("v_add_u32", V(v_ex), S(s_t0), V(v_ex))
    for i in range(8):
        g.ds_read("ds_read_b128", vQf + 4 * i, 4, v_ex, i * 1024)

    def k_addr_off(it):
        return item_slot(it) * SLOT

    cur_kbase = [0]

    def k_rebase(it):
        base = (k_addr_off(it) // 65536) * 65536
        if base != cur_kbase[0]:
            d = base - cur_kbase[0]
            for s in range(8):
                g.valu("v_add_u32", V(v_kA + s), d & 0xFFFFFFFF, V(v_kA + s))
            cur_kbase[0] = base

    def k_read(it, s):
        off = k_addr_off(it) - cur_kbase[0]
        g.ds_read("ds_read_b128", vF + 4 * s, 4, v_kA + s, off)

    cur_vbase = [0]

    def v_rebase(it):
        base = (item_slot(it) * SLOT // 65536) * 65536
        if base != cur_vbase[0]:
            d = base - cur_vbase[0]
            for t in range(4):
                g.valu("v_add_u32", V(v_vA + t), d & 0xFFFFFFFF, V(v_vA + t))
            cur_vbase[0] = base

    def v_read(it, u, t):
        off = item_slot(it) * SLOT - cur_vbase[0]
        f = vF + 4 * (4 * u + t)
        for e in range(2):
            g.ds_read("ds_read_b64_tr_b16", f + 2 * e, 2, v_vA + t, off + (16 * u + 8 * e) * 256)

    g.wait(lgkm=0)
    g.cond_begin(s_role, 1)
    g.wait(vm=4 * 7)
    g.cond_end()
    g.barrier()
    issue_item(8)
    issue_item(9)
    for s in range(8):
        k_read(0, s)

    def maxtile(j, first):
        b = vS + 16 * j
        ops = []
        if first:
            ops.append(lambda: g.valu("v_max3_f32", V(v_m), V(b), V(b + 1), V(b + 2)))
            ops.append(lambda: g.valu("v_max3_f32", V(v_l), V(b + 3), V(b + 4), V(b + 5)))
            k = 6
        else:
            k = 0
        while k + 1 < 16:
            tgt = v_m if (k // 2) % 2 == 0 else v_l
            ops.append(lambda k=k, tgt=tgt: g.valu("v_max3_f32", V(tgt), V(tgt), V(b + k), V(b + k + 1)))
            k += 2
        return ops

    for j in range(8):
        g.wait(lgkm=0)
        g.cond_begin(s_role, 1)
        g.wait(vm=4 * (min(16, j + 10) - (j + 2)))
        g.cond_end()
        g.barrier()
        if j + 10 < 16:
            issue_item(j + 10)
        nxt = j + 1
        if nxt < 8:
            k_rebase(nxt)
        else:
            v_rebase(8)
        mx = maxtile(j - 1, j == 1) if j >= 1 else []
        for s in range(8):
            g.mfma32(vS + 16 * j, vF + 4 * s, vQf + 4 * s, "0" if s == 0 else vS + 16 * j)
            if nxt < 8:
                k_read(nxt, s)
            else:
                v_read(8, s // 4, s % 4)
            if mx:
                mx.pop(0)()
        while mx:
            mx.pop(0)()
    for op in maxtile(7, False):
        op()
    g.valu("v_max_f32", V(v_m), V(v_m), V(v_l))
    g.valu("v_mov_b32", V(v_t), V(v_m))
    g.valu("v_permlane32_swap_b32", V(v_m), V(v_t), permlane=True)
    g.valu("v_max_f32", V(v_m), V(v_m), V(v_t))
    g.valu("v_mul_f32", V(v_mc), S(s_c), V(v_m))
    g.valu("v_sub_f32", V(v_mc), 0, V(v_mc))
    g.salu("s_lshl_b32", S(s_t0), S(s_wave), 8)
    g.salu("s_add_u32", S(s_t0), S(s_t0), 8 * SLOT)
    g.valu("v_lshlrev_b32", V(v_ex), 2, lane)
    g.valu("v_add_u32", V(v_ex), S(s_t0), V(v_ex))
    g.ds_write("ds_write_b32", v_ex, v_m, 1, 0)

    def exp_ops(j, first):
        b = vS + 16 * j
        ops = []
        for r2 in range(8):
            a0, a1 = b + 2 * r2, b + 2 * r2 + 1
            ops.append(lambda a0=a0: g.valu("v_fma_f32", V(a0), V(a0), S(s_c), V(v_mc)))
            ops.append(lambda a1=a1: g.valu("v_fma_f32", V(a1), V(a1), S(s_c), V(v_mc)))
            ops.append(lambda a0=a0: g.valu("v_exp_f32", V(a0), V(a0), trans=True))
            ops.append(lambda a1=a1: g.valu("v_exp_f32", V(a1), V(a1), trans=True))
            if first and r2 == 0:
                ops.append(lambda a0=a0: g.valu("v_mov_b32", V(v_l), V(a0)))
                ops.append(lambda a1=a1: g.valu("v_mov_b32", V(v_l2), V(a1)))
            else:
                ops.append(lambda a0=a0: g.valu("v_add_f32", V(v_l), V(v_l), V(a0)))
                ops.append(lambda a1=a1: g.valu("v_add_f32", V(v_l2), V(v_l2), V(a1)))
            ops.append(lambda a0=a0, a1=a1, d=b + r2: g.valu("v_cvt_pk_bf16_f32", V(d), V(a0), V(a1)))
        return ops

    for op in exp_ops(0, True):
        op()

    for j in range(8):
        it = 8 + j
        g.wait(lgkm=0)
        g.cond_begin(s_role, 1)
        g.wait(vm=4 * max(0, 6 - j))
        g.cond_end()
        g.barrier()
        nxt = it + 1
        if nxt < 16:
            v_rebase(nxt)
        ex = exp_ops(j + 1, False) if j + 1 < 8 else []
        if j == 6:
            def fin_l():
                g.valu("v_add_f32", V(v_l), V(v_l), V(v_l2))
                g.valu("v_mov_b32", V(v_t), V(v_l))
                g.valu("v_permlane32_swap_b32", V(v_l), V(v_t), permlane=True)
                g.valu("v_add_f32", V(v_l), V(v_l), V(v_t))
                g.ds_write("ds_write_b32", v_ex, v_l, 1, 2048)
            ex.append(fin_l)
        if j == 7:
            def fin_g():
                g.valu("v_xor_b32", V(v_t3), 1024, V(v_ex))
                g.ds_read("ds_read_b32", v_t, 1, v_t3, 0)
                g.ds_read("ds_read_b32", v_t2, 1, v_t3, 2048)
                g.valu("v_max_f32", V(v_g), V(v_m), V(v_t))
                g.valu("v_sub_f32", V(v_m), V(v_m), V(v_g))
                g.valu("v_sub_f32", V(v_t), V(v_t), V(v_g))
                g.valu("v_mul_f32", V(v_m), S(s_c), V(v_m))
                g.valu("v_mul_f32", V(v_t), S(s_c), V(v_t))
                g.valu("v_exp_f32", V(v_m), V(v_m), trans=True)
                g.valu("v_exp_f32", V(v_t), V(v_t), trans=True)
                g.valu("v_mul_f32", V(v_l), V(v_l), V(v_m))
                g.valu("v_fma_f32", V(v_l), V(v_t2), V(v_t), V(v_l))
                g.valu("v_rcp_f32", V(v_l), V(v_l), trans=True)
                g.valu("v_mul_f32", V(v_g), V(v_m), V(v_l))
            ex.append(fin_g)
        per = (len(ex) + 7) // 8
        for i in range(8):
            u, t = i // 4, i % 4
            g.mfma32(vO + 16 * t, vF + 4 * i, vS + 16 * j + 4 * u, "0" if (j == 0 and u == 0) else vO + 16 * t)
            if nxt < 16:
                v_read(nxt, u, t)
            for _ in range(per):
                if ex:
                    ex.pop(0)()
        while ex:
            ex.pop(0)()

    for r in range(64):
        g.valu("v_mul_f32", V(vO + r), V(vO + r), V(v_g))
    g.salu("s_lshl_b32", S(s_t0), S(s_wave), 13)
    g.valu("v_lshlrev_b32", V(v_ex), 4, lane)
    g.valu("v_add_u32", V(v_ex), S(s_t0), V(v_ex))
    for role in range(2):
        g.cond_begin(s_role, role)
        sb = vO + 32 * (1 - role)
        for qd in range(8):
            g.ds_write("ds_write_b128", v_ex, sb + 4 * qd, 4, qd * 1024)
        g.cond_end()
    g.wait(lgkm=0)
    g.barrier()
    g.valu("v_xor_b32", V(v_ex), 4 * 8192, V(v_ex))
    for qd in range(8):
        g.ds_read("ds_read_b128", vS + 4 * qd, 4, v_ex, qd * 1024)
    g.valu("v_and_b32", V(v_t), 31, lane)
    g.salu("s_lshl_b32", S(s_t0), S(s_qg), 5)
    g.valu("v_add_u32", V(v_t), S(s_t0), V(v_t))
    g.valu("v_cmp_gt_u32", "vcc", 112, V(v_t), vcc_w=True)
    g.wait(lgkm=0)
    g.text("  s_and_saveexec_b64 s[46:47], vcc")
    g.hist.append(type(g.hist[-1])("other", set(), set(), set(), set()))
    for role in range(2):
        g.cond_begin(s_role, role)
        kb = vO + 32 * role
        for r in range(32):
            g.valu("v_add_f32", V(vS + r), V(vS + r), V(kb + r))
        g.cond_end()
    for r2 in range(16):
        g.valu("v_cvt_pk_bf16_f32", V(vS + 32 + r2), V(vS + 2 * r2), V(vS + 2 * r2 + 1))
    for tt in range(2):
        for u in range(2):
            g.bstore(vS + 32 + 8 * tt + 4 * u, 4, v_oo, SO, 0, 64 * tt + 32 * u)
    g.text(f"{end}:")
    g.text("  s_endpgm")


def k2(g, name="oproj_kernel"):
    header(g, name)
    end = g.label("END")
    SOo, SWo, SP = 4, 8, 12
    s_wave, s_role, s_qg, s_b, s_nq, s_ks, s_t0, s_t1 = 24, 25, 26, 27, 28, 29, 30, 31
    g.text("  s_load_dwordx2 s[36:37], s[0:1], 32")
    g.text("  s_load_dwordx2 s[44:45], s[0:1], 56")
    g.scmp("s_cmp_ge_u32", S(2), 256)
    g.misc(f"s_cbranch_scc1 {end}")
    vAcc = 0
    vFr = 80
    vTmp = 80
    v_lane = 256 - 16
    v_dma = v_lane + 1
    v_oB = v_dma + 5
    v_wA = v_oB + 2
    v_t, v_t2, v_t3, v_ex, v_po = v_wA + 1, v_wA + 2, v_wA + 3, v_wA + 4, v_wA + 5
    lane = V(v_lane)
    g.valu("v_and_b32", lane, 63, V(0))
    g.valu("v_lshrrev_b32", V(v_t), 6, V(0))
    g.valu("v_readfirstlane_b32", S(s_wave), V(v_t), rdlane=True)
    g.salu("s_lshr_b32", S(s_role), S(s_wave), 2)
    g.salu("s_and_b32", S(s_qg), S(s_wave), 3)
    g.salu("s_and_b32", S(s_ks), S(2), 7)
    g.salu("s_lshr_b32", S(s_t0), S(2), 3)
    g.salu("s_and_b32", S(s_nq), S(s_t0), 3)
    g.salu("s_lshr_b32", S(s_b), S(s_t0), 2)
    g.text("  s_waitcnt lgkmcnt(0)")
    srd(g, SOo, 44, 45, O_BYTES)
    srd(g, SWo, 36, 37, 4096 * 640 * 2)
    g.salu("s_mov_b32", S(s_t0), PART_OFF)
    srd_off(g, SP, 44, 45, s_t0, PART_BYTES)
    BUF = 36864
    for i in range(5):
        g.valu("v_mov_b32", V(v_dma + i), 0)
    g.cond_begin(s_role, 0)
    for i in range(5):
        g.valu("v_lshlrev_b32", V(v_t), 4, lane)
        g.valu("v_add_u32", V(v_t), 1024 * i, V(v_t))
        g.valu("v_mul_u32_u24", V(v_t2), 3277, V(v_t))
        g.valu("v_lshrrev_b32", V(v_t2), 20, V(v_t2))
        g.valu("v_mul_u32_u24", V(v_t3), 320, V(v_t2))
        g.valu("v_sub_u32", V(v_t3), V(v_t), V(v_t3))
        g.valu("v_mul_u32_u24", V(v_t2), 1280, V(v_t2))
        g.valu("v_add_u32", V(v_t2), V(v_t2), V(v_t3))
        g.salu("s_mul_i32", S(s_t0), S(s_nq), 320)
        g.salu("s_add_u32", S(s_t0), S(s_t0), (-1024 * (i & 3)) & 0xFFFFFFFF)
        g.valu("v_add_u32", V(v_dma + i), S(s_t0), V(v_t2))
    g.cond_end()
    g.cond_begin(s_role, 1)
    g.salu("s_mul_i32", S(s_t0), S(s_b), 112)
    g.salu("s_lshl_b32", S(s_t1), S(s_qg), 5)
    g.salu("s_add_u32", S(s_t0), S(s_t0), S(s_t1))
    g.valu("v_lshrrev_b32", V(v_t), 3, lane)
    g.valu("v_add_u32", V(v_t), S(s_t0), V(v_t))
    g.valu("v_lshlrev_b32", V(v_t), 13, V(v_t))
    g.salu("s_lshl_b32", S(s_t0), S(s_ks), 10)
    g.valu("v_add_u32", V(v_t), S(s_t0), V(v_t))
    for i in range(4):
        g.valu("v_lshrrev_b32", V(v_t2), 4, lane)
        g.valu("v_add_u32", V(v_t2), (i & 1) * 4, V(v_t2))
        g.valu("v_xor_b32", V(v_t2), V(v_t2), lane)
        g.valu("v_and_b32", V(v_t2), 7, V(v_t2))
        g.valu("v_lshl_add_u32", V(v_dma + i), V(v_t2), 4, V(v_t))
        if i:
            g.valu("v_add_u32", V(v_dma + i), 8 * i * 8192 - 1024 * i, V(v_dma + i))
    g.cond_end()

    def issue(cc):
        buf = (cc & 3) * BUF
        g.cond_begin(s_role, 0)
        g.salu("s_mul_i32", S(s_t0), S(s_qg), 5120)
        g.salu("s_add_u32", "m0", S(s_t0), buf + 16384)
        g.salu("s_lshl_b32", S(s_t0), S(s_ks), 9)
        g.salu("s_lshl_b32", S(s_t1), S(s_qg), 4)
        g.salu("s_add_u32", S(s_t0), S(s_t0), S(s_t1))
        g.salu("s_add_u32", S(s_t0), S(s_t0), cc * 64)
        g.salu("s_mul_i32", S(s_t0), S(s_t0), 1280)
        for i in range(4):
            g.dma(v_dma + i, SWo, S(s_t0), 1024 * i)
        g.salu("s_add_u32", "m0", "m0", 4096)
        g.dma(v_dma + 4, SWo, S(s_t0), 0)
        g.cond_end()
        g.cond_begin(s_role, 1)
        g.salu("s_lshl_b32", S(s_t0), S(s_qg), 12)
        g.salu("s_add_u32", "m0", S(s_t0), buf)
        g.salu("s_mov_b32", S(s_t1), cc * 128)
        for i in range(4):
            g.dma(v_dma + i, SOo, S(s_t1), 1024 * i)
        g.cond_end()

    for cc in range(4):
        issue(cc)
    g.valu("v_and_b32", V(v_t), 31, lane)
    g.valu("v_lshrrev_b32", V(v_t2), 5, lane)
    g.salu("s_lshl_b32", S(s_t0), S(s_qg), 5)
    g.valu("v_add_u32", V(v_t), S(s_t0), V(v_t))
    g.valu("v_lshrrev_b32", V(v_ex), 1, V(v_t))
    g.valu("v_and_b32", V(v_ex), 7, V(v_ex))
    g.valu("v_xor_b32", V(v_ex), V(v_ex), V(v_t2))
    g.salu("s_lshl_b32", S(s_t0), S(s_role), 2)
    g.valu("v_xor_b32", V(v_ex), S(s_t0), V(v_ex))
    g.valu("v_lshlrev_b32", V(v_t), 7, V(v_t))
    g.valu("v_lshl_add_u32", V(v_oB), V(v_ex), 4, V(v_t))
    g.valu("v_xor_b32", V(v_oB + 1), 32, V(v_oB))
    g.valu("v_lshrrev_b32", V(v_t), 2, lane)
    g.valu("v_and_b32", V(v_t), 3, V(v_t))
    g.valu("v_lshl_add_u32", V(v_t), V(v_t2), 3, V(v_t))
    g.salu("s_lshl_b32", S(s_t0), S(s_role), 5)
    g.valu("v_add_u32", V(v_t), S(s_t0), V(v_t))
    g.valu("v_mul_u32_u24", V(v_t), 320, V(v_t))
    g.valu("v_and_b32", V(v_t2), 1, lane)
    g.valu("v_lshl_add_u32", V(v_t), V(v_t2), 4, V(v_t))
    g.valu("v_and_b32", V(v_t2), 2, lane)
    g.valu("v_lshl_add_u32", V(v_t), V(v_t2), 2, V(v_t))
    g.valu("v_and_b32", V(v_t2), 16, lane)
    g.valu("v_lshl_add_u32", V(v_t), V(v_t2), 1, V(v_t))
    g.valu("v_add_u32", V(v_wA), 16384, V(v_t))

    curbase = [0]

    def rebase(cc):
        base = (cc & 3) * BUF
        d = base - curbase[0]
        if d:
            for rg in (v_oB, v_oB + 1, v_wA):
                g.valu("v_add_u32", V(rg), d & 0xFFFFFFFF, V(rg))
            curbase[0] = base

    def fr(setn):
        b = vFr + setn * 48
        return dict(B=[b, b + 4], A=[[b + 8 + 4 * (5 * ss + t) for t in range(5)] for ss in range(2)])

    def reads(cc):
        f = fr(cc & 1)
        rebase(cc)
        for ss in range(2):
            g.ds_read("ds_read_b128", f["B"][ss], 4, v_oB + ss, 0)
            for t in range(5):
                for e in range(2):
                    g.ds_read("ds_read_b64_tr_b16", f["A"][ss][t] + 2 * e, 2, v_wA, t * 64 + (16 * ss + 4 * e) * 320)

    def vmwait(nchunks):
        g.cond_begin(s_role, 0)
        g.wait(vm=5 * nchunks)
        g.cond_end()
        g.cond_begin(s_role, 1)
        g.wait(vm=4 * nchunks)
        g.cond_end()

    vmwait(3)
    g.barrier()
    reads(0)
    NCH = 8
    for cc in range(NCH):
        g.wait(lgkm=0)
        if cc + 1 < NCH:
            vmwait(min(cc + 3, NCH - 1) - (cc + 1))
            g.barrier()
            if cc + 4 < NCH:
                issue(cc + 4)
            reads(cc + 1)
        f = fr(cc & 1)
        for ss in range(2):
            for t in range(5):
                first = (cc == 0 and ss == 0)
                g.mfma32(vAcc + 16 * t, f["A"][ss][t], f["B"][ss], "0" if first else vAcc + 16 * t)
    g.barrier()
    g.salu("s_mul_i32", S(s_t0), S(s_qg), 20480)
    g.valu("v_lshlrev_b32", V(v_ex), 4, lane)
    g.valu("v_add_u32", V(v_ex), S(s_t0), V(v_ex))
    g.cond_begin(s_role, 1)
    for qd in range(20):
        g.ds_write("ds_write_b128", v_ex, vAcc + 4 * qd, 4, qd * 1024)
    g.cond_end()
    g.wait(lgkm=0)
    g.barrier()
    g.cond_begin(s_role, 0)
    for qd in range(20):
        g.ds_read("ds_read_b128", vTmp + 4 * qd, 4, v_ex, qd * 1024)
    g.salu("s_lshl_b32", S(s_t0), S(s_ks), 3)
    g.salu("s_add_u32", S(s_t0), S(s_t0), S(s_b))
    g.salu("s_lshl_b32", S(s_t0), S(s_t0), 2)
    g.salu("s_add_u32", S(s_t0), S(s_t0), S(s_nq))
    g.salu("s_lshl_b32", S(s_t0), S(s_t0), 2)
    g.salu("s_add_u32", S(s_t0), S(s_t0), S(s_qg))
    g.salu("s_mul_i32", S(s_t0), S(s_t0), PART_PER_QG)
    g.valu("v_lshlrev_b32", V(v_po), 4, lane)
    g.valu("v_add_u32", V(v_po), S(s_t0), V(v_po))
    for qd in range(20):
        for k in range(4):
            g.valu("v_add_f32", V(vAcc + 4 * qd + k), V(vAcc + 4 * qd + k), V(vTmp + 4 * qd + k))
        if qd < 4:
            g.bstore(vAcc + 4 * qd, 4, v_po, SP, 0, qd * 1024)
        else:
            if qd % 4 == 0:
                g.valu("v_add_u32", V(v_po), 4096, V(v_po))
            g.bstore(vAcc + 4 * qd, 4, v_po, SP, 0, (qd % 4) * 1024)
    g.cond_end()
    g.text(f"{end}:")
    g.text("  s_endpgm")


def k3(g, name="reduce_kernel"):
    header(g, name)
    end = g.label("END")
    SP, SOut = 4, 8
    g.text("  s_load_dwordx2 s[36:37], s[0:1], 40")
    g.text("  s_load_dwordx2 s[44:45], s[0:1], 56")
    g.scmp("s_cmp_ge_u32", S(2), 160)
    g.misc(f"s_cbranch_scc1 {end}")
    v_lane, v_t, v_t2, v_po, v_oo = 200, 201, 202, 203, 204
    lane = V(v_lane)
    s_wave, s_gw, s_t, s_x, s_qg, s_nq, s_b, s_t0, s_t1 = 24, 25, 26, 27, 28, 29, 30, 31, 32
    g.valu("v_and_b32", lane, 63, V(0))
    g.valu("v_lshrrev_b32", V(v_t), 6, V(0))
    g.valu("v_readfirstlane_b32", S(s_wave), V(v_t), rdlane=True)
    g.salu("s_lshl_b32", S(s_gw), S(2), 2)
    g.salu("s_add_u32", S(s_gw), S(s_gw), S(s_wave))
    g.salu("s_mul_hi_u32", S(s_x), S(s_gw), 0x33333334)
    g.salu("s_mul_i32", S(s_t0), S(s_x), 5)
    g.salu("s_sub_u32", S(s_t), S(s_gw), S(s_t0))
    g.salu("s_and_b32", S(s_qg), S(s_x), 3)
    g.salu("s_lshr_b32", S(s_nq), S(s_x), 2)
    g.salu("s_and_b32", S(s_nq), S(s_nq), 3)
    g.salu("s_lshr_b32", S(s_b), S(s_x), 4)
    g.text("  s_waitcnt lgkmcnt(0)")
    g.salu("s_mov_b32", S(s_t0), PART_OFF)
    srd_off(g, SP, 44, 45, s_t0, PART_BYTES)
    srd(g, SOut, 36, 37, 896 * 640 * 2)
    g.salu("s_mul_i32", S(s_t0), S(s_x), PART_PER_QG)
    g.salu("s_lshl_b32", S(s_t1), S(s_t), 12)
    g.salu("s_add_u32", S(s_t0), S(s_t0), S(s_t1))
    g.valu("v_lshlrev_b32", V(v_po), 4, lane)
    g.valu("v_add_u32", V(v_po), S(s_t0), V(v_po))
    g.valu("v_and_b32", V(v_t), 31, lane)
    g.salu("s_lshl_b32", S(s_t0), S(s_qg), 5)
    g.valu("v_add_u32", V(v_t), S(s_t0), V(v_t))
    g.valu("v_cmp_gt_u32", "vcc", 112, V(v_t), vcc_w=True)
    g.salu("s_mul_i32", S(s_t0), S(s_b), 112)
    g.valu("v_add_u32", V(v_t), S(s_t0), V(v_t))
    g.valu("v_mul_u32_u24", V(v_t), 1280, V(v_t))
    g.valu("v_lshrrev_b32", V(v_t2), 5, lane)
    g.valu("v_lshl_add_u32", V(v_t), V(v_t2), 4, V(v_t))
    g.salu("s_mul_i32", S(s_t0), S(s_nq), 320)
    g.salu("s_lshl_b32", S(s_t1), S(s_t), 6)
    g.salu("s_add_u32", S(s_t0), S(s_t0), S(s_t1))
    g.valu("v_add_u32", V(v_oo), S(s_t0), V(v_t))
    g.text("  s_and_saveexec_b64 s[46:47], vcc")
    g.text(f"  s_cbranch_execz {end}")
    for ks in range(8):
        g.salu("s_mov_b32", S(40 + ks), ks * 128 * PART_PER_QG)
    for ks in range(8):
        for qd in range(4):
            g.bload(16 * ks + 4 * qd, 4, v_po, SP, S(40 + ks), qd * 1024)
    for ks in range(1, 8):
        g.wait(vm=4 * (7 - ks))
        for r in range(16):
            g.valu("v_add_f32", V(r), V(r), V(16 * ks + r))
    for r2 in range(8):
        g.valu("v_cvt_pk_bf16_f32", V(128 + r2), V(2 * r2), V(2 * r2 + 1))
    g.bstore(128, 4, v_oo, SOut, 0, 0)
    g.bstore(132, 4, v_oo, SOut, 0, 32)
    g.text(f"{end}:")
    g.text("  s_endpgm")


HEAD = """; Kernarg layout for this problem (64 bytes, ptrs only, base s[0:1]):
; @launch kernel=attn_kernel grid=(256,1,1) block=(512,1,1) lds=163840
; @launch kernel=oproj_kernel grid=(256,1,1) block=(512,1,1) lds=147456
; @launch kernel=reduce_kernel grid=(160,1,1) block=(256,1,1) lds=0
.amdgcn_target "amdgcn-amd-amdhsa--gfx950"
.text
"""


def main(out):
    parts = [HEAD]
    g = Gen(); g.nlabel = 0
    k1(g); parts.append(g.out())
    g2 = Gen(); g2.nlabel = 100000
    k2(g2); parts.append(g2.out())
    g3 = Gen(); g3.nlabel = 200000
    k3(g3); parts.append(g3.out())
    parts.append('.section .rodata,"a"\n.p2align 6\n')
    parts.append(kd("attn_kernel", 256))
    parts.append(".p2align 6\n" + kd("oproj_kernel", 256))
    parts.append(".p2align 6\n" + kd("reduce_kernel", 208))
    open(out, "w").write("".join(parts))


if __name__ == "__main__":
    main(sys.argv[1] if len(sys.argv) > 1 else "standalone__gqa_block_cached__near_ridge.s")
```

```python
import sys
from gen import Gen, vr, sr, rng

V = lambda i, n=1: ("v", i, n)
S = lambda i, n=1: ("s", i, n)

SLOT = 16384
O_BYTES = 896 * 4096 * 2
PART_OFF = 8 * 1024 * 1024
PART_BYTES = 8 * 896 * 640 * 4 * 8 // 7 * 1
PART_PER_QG = 5 * 4 * 64 * 16
PART_BYTES = 8 * 8 * 4 * 4 * PART_PER_QG

SCALE_LOG2E = (128 ** -0.5) * 1.4426950408889634


def f32hex(x):
    import struct
    return struct.unpack("<I", struct.pack("<f", x))[0]


def srd(g, base, lo, hi, nbytes):
    g.salu("s_mov_b32", S(base), S(lo))
    g.salu("s_and_b32", S(base + 1), S(hi), 0xFFFF)
    g.salu("s_mov_b32", S(base + 2), nbytes)
    g.salu("s_mov_b32", S(base + 3), 0x00020000)


def srd_off(g, base, lo, hi, offreg, nbytes):
    g.salu("s_add_u32", S(base), S(lo), S(offreg))
    g.salu("s_addc_u32", S(base + 1), S(hi), 0)
    g.salu("s_and_b32", S(base + 1), S(base + 1), 0xFFFF)
    g.salu("s_mov_b32", S(base + 2), nbytes)
    g.salu("s_mov_b32", S(base + 3), 0x00020000)


def header(g, name):
    g.text(f".globl {name}")
    g.text(".p2align 8")
    g.text(f".type {name},@function")
    g.text(f"{name}:")


def kd(name, vgpr, sgpr=96):
    return f""".amdhsa_kernel {name}
  .amdhsa_next_free_vgpr {vgpr}
  .amdhsa_next_free_sgpr {sgpr}
  .amdhsa_accum_offset {vgpr}
  .amdhsa_group_segment_fixed_size 0
  .amdhsa_kernarg_size 64
  .amdhsa_user_sgpr_count 2
  .amdhsa_user_sgpr_kernarg_segment_ptr 1
  .amdhsa_system_sgpr_workgroup_id_x 1
.end_amdhsa_kernel
"""


STAMPS = False
QSTAMP = False
K2STAMP = False
NST = [0]


def stamp(g):
    if not STAMPS:
        return
    i = NST[0]
    NST[0] += 1
    g.wait(lgkm=0)
    g.text("  s_memtime s[48:49]")
    g.text("  s_waitcnt lgkmcnt(0)")
    g.text(f"  s_mov_b32 s{50 + i}, s48")


def stamp_flush(g, ws_lo, ws_hi, wave_sreg, vtmp, vtmp2):
    if not STAMPS:
        return
    n = NST[0]
    NST[0] = 0
    g.text("  s_mov_b64 exec, -1")
    g.text(f"  s_add_u32 s92, s{ws_lo}, 0x4000000")
    g.text(f"  s_addc_u32 s93, s{ws_hi}, 0")
    g.text("  s_and_b32 s93, s93, 0xffff")
    g.text("  s_mov_b32 s94, 0x1000000")
    g.text("  s_mov_b32 s95, 0x20000")
    g.text(f"  s_lshl_b32 s48, s2, 3")
    g.text(f"  s_add_u32 s48, s48, s{wave_sreg}")
    g.text(f"  s_lshl_b32 s48, s48, 7")
    g.text(f"  v_mov_b32 v{vtmp}, s48")
    for i in range(n):
        g.text(f"  v_mov_b32 v{vtmp2}, s{50 + i}")
        g.text(f"  buffer_store_dword v{vtmp2}, v{vtmp}, s[92:95], 0 offen offset:{4 * i}")
        g.text("  s_nop 1")


def k1(g, name="attn_kernel"):
    header(g, name)
    end = g.label("END")
    SX, SW, SK, SV, SO = 4, 8, 12, 16, 20
    s_wave, s_role, s_qg, s_b, s_h, s_t0, s_t1, s_wl = 24, 25, 26, 27, 28, 29, 30, 31
    s_c = 32
    g.text("  s_load_dwordx4 s[36:39], s[0:1], 0")
    g.text("  s_load_dwordx4 s[40:43], s[0:1], 16")
    g.text("  s_load_dwordx2 s[44:45], s[0:1], 56")
    g.scmp("s_cmp_ge_u32", S(2), 256)
    g.misc(f"s_cbranch_scc1 {end}")
    vS = 0
    vO = 128
    vQacc = 128
    vQf = 160
    vF = 192
    v_lane = 224
    v_xB = 225
    v_wA = 227
    v_dma = 229
    v_dmaV = 233
    v_kA = 234
    v_vA = 242
    v_m = 246
    v_l = 247
    v_mc = 248
    v_t = 249
    v_t2 = 250
    v_t3 = 251
    v_l2 = 252
    v_oo = 253
    v_ex = 254
    v_g = 255

    g.valu("v_and_b32", V(v_lane), 63, V(0))
    g.valu("v_lshrrev_b32", V(v_t), 6, V(0))
    g.valu("v_readfirstlane_b32", S(s_wave), V(v_t), rdlane=True)
    g.salu("s_lshr_b32", S(s_role), S(s_wave), 2)
    g.salu("s_and_b32", S(s_qg), S(s_wave), 3)
    g.salu("s_lshr_b32", S(s_b), S(2), 5)
    g.salu("s_and_b32", S(s_h), S(2), 31)
    g.salu("s_mov_b32", S(s_c), f32hex(SCALE_LOG2E))
    g.text("  s_waitcnt lgkmcnt(0)")
    srd(g, SX, 36, 37, 8 * 112 * 640 * 2)
    srd(g, SW, 42, 43, 640 * 4096 * 2)
    g.salu("s_lshl_b32", S(s_t0), S(2), 17)
    srd_off(g, SK, 38, 39, s_t0, 131072)
    srd_off(g, SV, 40, 41, s_t0, 131072)
    srd(g, SO, 44, 45, O_BYTES)

    lane = V(v_lane)
    for i in range(5):
        g.valu("v_mov_b32", V(v_dma + i), 0)
    g.cond_begin(s_role, 0)
    g.salu("s_mul_i32", S(s_t0), S(s_b), 112)
    g.salu("s_lshl_b32", S(s_t1), S(s_qg), 5)
    g.salu("s_add_u32", S(s_t0), S(s_t0), S(s_t1))
    g.valu("v_lshrrev_b32", V(v_t), 2, lane)
    g.valu("v_add_u32", V(v_t), S(s_t0), V(v_t))
    g.valu("v_mul_u32_u24", V(v_t), 1280, V(v_t))
    g.valu("v_lshrrev_b32", V(v_t2), 4, lane)
    g.valu("v_xor_b32", V(v_t2), V(v_t2), lane)
    g.valu("v_and_b32", V(v_t2), 3, V(v_t2))
    g.valu("v_lshl_add_u32", V(v_dma + 0), V(v_t2), 4, V(v_t))
    g.valu("v_add_u32", V(v_dma + 1), 16 * 1280 - 1024, V(v_dma + 0))
    g.valu("v_lshrrev_b32", V(v_t), 4, lane)
    g.valu("v_lshlrev_b32", V(v_t2), 2, V(v_t))
    g.valu("v_xor_b32", V(v_t2), V(v_t2), lane)
    g.valu("v_and_b32", V(v_t2), 15, V(v_t2))
    g.salu("s_lshl_b32", S(s_t0), S(s_qg), 3)
    g.valu("v_add_u32", V(v_t), S(s_t0), V(v_t))
    g.valu("v_lshlrev_b32", V(v_t), 13, V(v_t))
    g.valu("v_lshl_add_u32", V(v_t), V(v_t2), 4, V(v_t))
    g.salu("s_lshl_b32", S(s_t0), S(s_h), 8)
    g.valu("v_add_u32", V(v_dma + 2), S(s_t0), V(v_t))
    g.valu("v_add_u32", V(v_dma + 3), 4 * 8192 - 1024, V(v_dma + 2))
    g.cond_end()
    g.cond_begin(s_role, 1)
    g.valu("v_lshrrev_b32", V(v_t), 4, lane)
    for i in range(4):
        g.valu("v_add_u32", V(v_t2), 4 * i, V(v_t))
        g.valu("v_xor_b32", V(v_t2), V(v_t2), lane)
        g.valu("v_and_b32", V(v_t2), 15, V(v_t2))
        g.valu("v_lshlrev_b32", V(v_t2), 4, V(v_t2))
        g.valu("v_lshl_add_u32", V(v_dma + i), V(v_t), 8, V(v_t2))
    g.valu("v_lshlrev_b32", V(v_t2), 2, V(v_t))
    g.valu("v_xor_b32", V(v_t2), V(v_t2), lane)
    g.valu("v_and_b32", V(v_t2), 15, V(v_t2))
    g.valu("v_lshlrev_b32", V(v_t2), 4, V(v_t2))
    g.valu("v_lshl_add_u32", V(v_dmaV), V(v_t), 8, V(v_t2))
    g.cond_end()
    g.salu("s_lshl_b32", S(s_wl), S(s_qg), 12)

    QBASE = 6 * SLOT

    def issue_chunk(c):
        buf = QBASE + (c & 3) * SLOT
        g.cond_begin(s_role, 0)
        g.salu("s_lshl_b32", S(s_t0), S(s_qg), 11)
        g.salu("s_add_u32", "m0", S(s_t0), buf)
        g.salu("s_mov_b32", S(s_t1), c * 64)
        g.dma(v_dma + 0, SX, S(s_t1))
        g.dma(v_dma + 1, SX, S(s_t1), 1024)
        g.salu("s_add_u32", "m0", S(s_t0), buf + 8192)
        g.salu("s_mov_b32", S(s_t1), c * 262144)
        g.dma(v_dma + 2, SW, S(s_t1))
        g.dma(v_dma + 3, SW, S(s_t1), 1024)
        g.cond_end()

    def item_slot(it):
        return {0: 0, 1: 1, 2: 2, 3: 3, 4: 4, 5: 5, 6: 8, 7: 9, 8: 6, 9: 7, 10: 0, 11: 1, 12: 2, 13: 3, 14: 4, 15: 5}[it]

    def issue_item(it, inside=False):
        base = item_slot(it) * SLOT
        if not inside:
            g.cond_begin(s_role, 1)
        g.salu("s_add_u32", "m0", S(s_wl), base)
        g.salu("s_add_u32", S(s_t1), S(s_wl), (it & 7) * SLOT)
        for i in range(4):
            if it < 8:
                g.dma(v_dma + i, SK, S(s_t1), 1024 * i, " nt")
            else:
                g.dma(v_dmaV, SV, S(s_t1), 1024 * i, " nt")
        if not inside:
            g.cond_end()

    stamp(g)
    for c in range(4):
        issue_chunk(c)
    g.cond_begin(s_role, 1)
    issue_item(0, inside=True)
    g.salu("s_lshr_b32", S(s_t0), S(s_h), 3)
    g.salu("s_lshl_b32", S(33), S(s_b), 2)
    g.salu("s_add_u32", S(33), S(33), S(s_t0))
    g.salu("s_mul_i32", S(s_t0), S(33), 280)
    g.salu("s_mul_i32", S(s_t1), S(s_qg), 70)
    g.salu("s_add_u32", S(s_t0), S(s_t0), S(s_t1))
    g.valu("v_add_u32", V(v_t), S(s_t0), lane)
    g.valu("v_lshlrev_b32", V(v_t), 7, V(v_t))
    g.bload(v_t3, 1, v_t, SX, 0, 0)
    g.valu("v_add_u32", V(v_t), 6 * 128, V(v_t))
    g.bload(v_t3, 1, v_t, SX, 0, 0)
    g.salu("s_lshr_b32", S(s_t0), S(33), 2)
    g.salu("s_mul_i32", S(s_t0), S(s_t0), 80)
    g.salu("s_mul_i32", S(s_t1), S(s_qg), 20)
    g.salu("s_add_u32", S(s_t0), S(s_t0), S(s_t1))
    g.valu("v_lshrrev_b32", V(v_t), 1, lane)
    g.valu("v_min_u32", V(v_t), 19, V(v_t))
    g.valu("v_add_u32", V(v_t), S(s_t0), V(v_t))
    g.valu("v_lshlrev_b32", V(v_t), 13, V(v_t))
    g.valu("v_and_b32", V(v_t2), 1, lane)
    g.valu("v_lshl_add_u32", V(v_t), V(v_t2), 7, V(v_t))
    g.salu("s_and_b32", S(s_t0), S(33), 3)
    g.salu("s_lshl_b32", S(s_t0), S(s_t0), 3)
    g.salu("s_and_b32", S(s_t1), S(s_h), 7)
    g.salu("s_add_u32", S(s_t0), S(s_t0), S(s_t1))
    g.salu("s_lshl_b32", S(s_t0), S(s_t0), 8)
    g.bload(v_t3, 1, v_t, SW, S(s_t0), 0)
    issue_item(1, inside=True)
    g.cond_end()

    l31 = v_t3
    g.valu("v_and_b32", V(v_t), 31, lane)
    g.valu("v_lshrrev_b32", V(v_t2), 5, lane)
    g.salu("s_lshl_b32", S(s_t0), S(s_qg), 5)
    g.valu("v_add_u32", V(v_g), S(s_t0), V(v_t))
    g.valu("v_lshrrev_b32", V(v_ex), 2, V(v_g))
    g.valu("v_and_b32", V(v_ex), 3, V(v_ex))
    g.valu("v_xor_b32", V(v_ex), V(v_ex), V(v_t2))
    g.valu("v_lshlrev_b32", V(v_g), 6, V(v_g))
    g.valu("v_lshl_add_u32", V(v_xB), V(v_ex), 4, V(v_g))
    g.valu("v_add_u32", V(v_xB), QBASE, V(v_xB))
    g.valu("v_xor_b32", V(v_xB + 1), 32, V(v_xB))
    vr_r, vr_col = v_m, v_l
    g.valu("v_lshrrev_b32", V(vr_r), 2, lane)
    g.valu("v_and_b32", V(vr_r), 3, V(vr_r))
    g.valu("v_and_b32", V(vr_col), 1, lane)
    g.valu("v_lshlrev_b32", V(vr_col), 4, V(vr_col))
    g.valu("v_and_b32", V(v_g), 2, lane)
    g.valu("v_lshl_add_u32", V(vr_col), V(v_g), 2, V(vr_col))
    g.valu("v_and_b32", V(v_g), 16, lane)
    g.valu("v_lshl_add_u32", V(vr_col), V(v_g), 1, V(vr_col))
    g.valu("v_lshl_add_u32", V(v_g), V(v_t2), 3, V(vr_r))
    g.valu("v_lshl_add_u32", V(v_g), V(v_g), 8, V(vr_col))
    g.valu("v_add_u32", V(v_g), QBASE + 8192, V(v_g))
    g.salu("s_lshl_b32", S(s_t0), S(s_role), 1)
    for t in range(2):
        g.salu("s_add_u32", S(s_t1), S(s_t0), t)
        g.valu("v_xor_b32", V(v_ex), S(s_t1), V(vr_r))
        g.valu("v_lshl_add_u32", V(v_wA + t), V(v_ex), 6, V(v_g))
    g.valu("v_lshl_add_u32", V(v_g), V(v_t2), 2, V(vr_r))
    g.salu("s_lshl_b32", S(s_t0), S(s_role), 5)
    g.valu("v_add_u32", V(v_g), S(s_t0), V(v_g))
    g.valu("v_lshl_add_u32", V(v_g), V(v_g), 8, V(vr_col))
    for t in range(4):
        g.valu("v_xor_b32", V(v_ex), t, V(vr_r))
        g.valu("v_lshl_add_u32", V(v_vA + t), V(v_ex), 6, V(v_g))
    g.valu("v_add_u32", V(v_g), S(s_t0), V(v_t))
    g.valu("v_and_b32", V(v_ex), 15, V(v_g))
    g.valu("v_xor_b32", V(v_ex), V(v_ex), V(v_t2))
    g.valu("v_lshlrev_b32", V(v_g), 8, V(v_g))
    g.valu("v_lshl_add_u32", V(v_kA), V(v_ex), 4, V(v_g))
    for s in range(1, 8):
        g.valu("v_xor_b32", V(v_kA + s), s << 5, V(v_kA))
    g.salu("s_mul_i32", S(s_t0), S(s_b), 112)
    g.salu("s_lshl_b32", S(s_t1), S(s_qg), 5)
    g.salu("s_add_u32", S(s_t0), S(s_t0), S(s_t1))
    g.valu("v_add_u32", V(v_g), S(s_t0), V(v_t))
    g.valu("v_lshlrev_b32", V(v_g), 13, V(v_g))
    g.valu("v_lshl_add_u32", V(v_g), V(v_t2), 4, V(v_g))
    g.salu("s_lshl_b32", S(s_t0), S(s_h), 8)
    g.salu("s_lshl_b32", S(s_t1), S(s_role), 7)
    g.salu("s_add_u32", S(s_t0), S(s_t0), S(s_t1))
    g.valu("v_add_u32", V(v_oo), S(s_t0), V(v_g))

    def qfr(setn):
        b = setn * 24
        return dict(B=[b, b + 4], A=[[b + 8, b + 12], [b + 16, b + 20]])

    def q_reads(c):
        f = qfr(c & 1)
        off = (c & 3) * SLOT
        for s in range(2):
            g.ds_read("ds_read_b128", f["B"][s], 4, v_xB + s, off)
            for t in range(2):
                for e in range(2):
                    g.ds_read("ds_read_b64_tr_b16", f["A"][s][t] + 2 * e, 2, v_wA + t, off + (16 * s + 4 * e) * 256)

    stamp(g)
    g.cond_begin(s_role, 0)
    g.wait(vm=12)
    g.cond_end()
    g.barrier()
    stamp(g)
    q_reads(0)
    NCH = 20
    KPACE = {2: 2, 6: 3, 10: 4, 14: 5}
    for c in range(NCH):
        g.wait(lgkm=0)
        if c + 1 < NCH:
            outstanding = min(c + 3, NCH - 1) - (c + 1)
            if QSTAMP and c in (8, 9):
                stamp(g)
            g.cond_begin(s_role, 0)
            g.wait(vm=4 * outstanding)
            g.cond_end()
            if QSTAMP and c in (8, 9):
                stamp(g)
            g.barrier()
            if QSTAMP and c in (8, 9):
                stamp(g)
            q_reads(c + 1)
        f = qfr(c & 1)
        for s in range(2):
            for t in range(2):
                first = (c == 0 and s == 0)
                g.mfma32(vQacc + 16 * t, f["A"][s][t], f["B"][s], "0" if first else vQacc + 16 * t)
        if QSTAMP and c in (8, 9):
            stamp(g)
        if c + 4 < NCH:
            issue_chunk(c + 4)
        if QSTAMP and c in (8, 9):
            stamp(g)
        if c in KPACE:
            issue_item(KPACE[c])

    g.salu("s_lshl_b32", S(s_t0), S(s_qg), 13)
    g.salu("s_lshl_b32", S(s_t1), S(s_role), 12)
    g.salu("s_add_u32", S(s_t0), S(s_t0), S(s_t1))
    g.salu("s_add_u32", S(s_t0), S(s_t0), QBASE)
    g.valu("v_lshlrev_b32", V(v_ex), 4, lane)
    g.valu("v_add_u32", V(v_ex), S(s_t0), V(v_ex))
    tmpq = 64
    for t in range(2):
        for u in range(2):
            for j in range(4):
                g.valu("v_cvt_pk_bf16_f32", V(tmpq + 8 * t + 4 * u + j), V(vQacc + 16 * t + 8 * u + 2 * j),
                       V(vQacc + 16 * t + 8 * u + 2 * j + 1))
    for i in range(4):
        g.ds_write("ds_write_b128", v_ex, tmpq + 4 * i, 4, i * 1024)
    g.wait(lgkm=0)
    stamp(g)
    g.barrier()
    issue_item(6)
    issue_item(7)
    g.salu("s_lshl_b32", S(s_t0), S(s_qg), 13)
    g.salu("s_add_u32", S(s_t0), S(s_t0), QBASE)
    g.valu("v_lshlrev_b32", V(v_ex), 4, lane)
    g.valu("v_add_u32", V(v_ex), S(s_t0), V(v_ex))
    for i in range(8):
        g.ds_read("ds_read_b128", vQf + 4 * i, 4, v_ex, i * 1024)

    def k_addr_off(it):
        return item_slot(it) * SLOT

    cur_kbase = [0]

    def k_rebase(it):
        base = (k_addr_off(it) // 65536) * 65536
        if base != cur_kbase[0]:
            d = base - cur_kbase[0]
            for s in range(8):
                g.valu("v_add_u32", V(v_kA + s), d & 0xFFFFFFFF, V(v_kA + s))
            cur_kbase[0] = base

    def k_read(it, s):
        off = k_addr_off(it) - cur_kbase[0]
        g.ds_read("ds_read_b128", vF + 4 * s, 4, v_kA + s, off)

    cur_vbase = [0]

    def v_rebase(it):
        base = (item_slot(it) * SLOT // 65536) * 65536
        if base != cur_vbase[0]:
            d = base - cur_vbase[0]
            for t in range(4):
                g.valu("v_add_u32", V(v_vA + t), d & 0xFFFFFFFF, V(v_vA + t))
            cur_vbase[0] = base

    def v_read(it, u, t):
        off = item_slot(it) * SLOT - cur_vbase[0]
        f = vF + 4 * (4 * u + t)
        for e in range(2):
            g.ds_read("ds_read_b64_tr_b16", f + 2 * e, 2, v_vA + t, off + (16 * u + 8 * e) * 256)

    g.wait(lgkm=0)
    g.cond_begin(s_role, 1)
    g.wait(vm=4 * 7)
    g.cond_end()
    g.barrier()
    stamp(g)
    for s in range(8):
        k_read(0, s)
    issue_item(8)
    issue_item(9)

    def maxtile(j, first):
        b = vS + 16 * j
        ops = []
        if first:
            ops.append(lambda: g.valu("v_max3_f32", V(v_m), V(b), V(b + 1), V(b + 2)))
            ops.append(lambda: g.valu("v_max3_f32", V(v_l), V(b + 3), V(b + 4), V(b + 5)))
            k = 6
        else:
            k = 0
        while k + 1 < 16:
            tgt = v_m if (k // 2) % 2 == 0 else v_l
            ops.append(lambda k=k, tgt=tgt: g.valu("v_max3_f32", V(tgt), V(tgt), V(b + k), V(b + k + 1)))
            k += 2
        return ops

    for j in range(8):
        g.wait(lgkm=0)
        g.cond_begin(s_role, 1)
        g.wait(vm=4 * (min(16, j + 10) - (j + 2)))
        g.cond_end()
        g.barrier()
        nxt = j + 1
        if nxt < 8:
            k_rebase(nxt)
        else:
            v_rebase(8)
        mx = maxtile(j - 1, j == 1) if j >= 1 else []
        for s in range(8):
            g.mfma32(vS + 16 * j, vF + 4 * s, vQf + 4 * s, "0" if s == 0 else vS + 16 * j)
            if nxt < 8:
                k_read(nxt, s)
            else:
                v_read(8, s // 4, s % 4)
            if mx:
                mx.pop(0)()
        while mx:
            mx.pop(0)()
        if j + 10 < 16:
            issue_item(j + 10)
    stamp(g)
    for op in maxtile(7, False):
        op()
    g.valu("v_max_f32", V(v_m), V(v_m), V(v_l))
    g.valu("v_mov_b32", V(v_t), V(v_m))
    g.valu("v_permlane32_swap_b32", V(v_m), V(v_t), permlane=True)
    g.valu("v_max_f32", V(v_m), V(v_m), V(v_t))
    g.valu("v_mul_f32", V(v_mc), S(s_c), V(v_m))
    g.valu("v_sub_f32", V(v_mc), 0, V(v_mc))
    g.salu("s_lshl_b32", S(s_t0), S(s_wave), 8)
    g.salu("s_add_u32", S(s_t0), S(s_t0), 8 * SLOT)
    g.valu("v_lshlrev_b32", V(v_ex), 2, lane)
    g.valu("v_add_u32", V(v_ex), S(s_t0), V(v_ex))
    g.ds_write("ds_write_b32", v_ex, v_m, 1, 0)

    def exp_ops(j, first):
        b = vS + 16 * j
        ops = []
        for r2 in range(8):
            a0, a1 = b + 2 * r2, b + 2 * r2 + 1
            ops.append(lambda a0=a0: g.valu("v_fma_f32", V(a0), V(a0), S(s_c), V(v_mc)))
            ops.append(lambda a1=a1: g.valu("v_fma_f32", V(a1), V(a1), S(s_c), V(v_mc)))
            ops.append(lambda a0=a0: g.valu("v_exp_f32", V(a0), V(a0), trans=True))
            ops.append(lambda a1=a1: g.valu("v_exp_f32", V(a1), V(a1), trans=True))
            if first and r2 == 0:
                ops.append(lambda a0=a0: g.valu("v_mov_b32", V(v_l), V(a0)))
                ops.append(lambda a1=a1: g.valu("v_mov_b32", V(v_l2), V(a1)))
            else:
                ops.append(lambda a0=a0: g.valu("v_add_f32", V(v_l), V(v_l), V(a0)))
                ops.append(lambda a1=a1: g.valu("v_add_f32", V(v_l2), V(v_l2), V(a1)))
            ops.append(lambda a0=a0, a1=a1, d=b + r2: g.valu("v_cvt_pk_bf16_f32", V(d), V(a0), V(a1)))
        return ops

    for op in exp_ops(0, True):
        op()

    stamp(g)
    for j in range(8):
        it = 8 + j
        g.wait(lgkm=0)
        g.cond_begin(s_role, 1)
        g.wait(vm=4 * max(0, 6 - j))
        g.cond_end()
        g.barrier()
        nxt = it + 1
        if nxt < 16:
            v_rebase(nxt)
        ex = exp_ops(j + 1, False) if j + 1 < 8 else []
        if j == 6:
            def fin_l():
                g.valu("v_add_f32", V(v_l), V(v_l), V(v_l2))
                g.valu("v_mov_b32", V(v_t), V(v_l))
                g.valu("v_permlane32_swap_b32", V(v_l), V(v_t), permlane=True)
                g.valu("v_add_f32", V(v_l), V(v_l), V(v_t))
                g.ds_write("ds_write_b32", v_ex, v_l, 1, 2048)
            ex.append(fin_l)
        if j == 7:
            def fin_g():
                g.valu("v_xor_b32", V(v_t3), 1024, V(v_ex))
                g.ds_read("ds_read_b32", v_t, 1, v_t3, 0)
                g.ds_read("ds_read_b32", v_t2, 1, v_t3, 2048)
                g.valu("v_max_f32", V(v_g), V(v_m), V(v_t))
                g.valu("v_sub_f32", V(v_m), V(v_m), V(v_g))
                g.valu("v_sub_f32", V(v_t), V(v_t), V(v_g))
                g.valu("v_mul_f32", V(v_m), S(s_c), V(v_m))
                g.valu("v_mul_f32", V(v_t), S(s_c), V(v_t))
                g.valu("v_exp_f32", V(v_m), V(v_m), trans=True)
                g.valu("v_exp_f32", V(v_t), V(v_t), trans=True)
                g.valu("v_mul_f32", V(v_l), V(v_l), V(v_m))
                g.valu("v_fma_f32", V(v_l), V(v_t2), V(v_t), V(v_l))
                g.valu("v_rcp_f32", V(v_l), V(v_l), trans=True)
                g.valu("v_mul_f32", V(v_g), V(v_m), V(v_l))
            ex.append(fin_g)
        per = (len(ex) + 7) // 8
        for i in range(8):
            u, t = i // 4, i % 4
            g.mfma32(vO + 16 * t, vF + 4 * i, vS + 16 * j + 4 * u, "0" if (j == 0 and u == 0) else vO + 16 * t)
            if nxt < 16:
                v_read(nxt, u, t)
            for _ in range(per):
                if ex:
                    ex.pop(0)()
        while ex:
            ex.pop(0)()

    stamp(g)
    for r in range(64):
        g.valu("v_mul_f32", V(vO + r), V(vO + r), V(v_g))
    g.salu("s_lshl_b32", S(s_t0), S(s_wave), 13)
    g.valu("v_lshlrev_b32", V(v_ex), 4, lane)
    g.valu("v_add_u32", V(v_ex), S(s_t0), V(v_ex))
    for role in range(2):
        g.cond_begin(s_role, role)
        sb = vO + 32 * (1 - role)
        for qd in range(8):
            g.ds_write("ds_write_b128", v_ex, sb + 4 * qd, 4, qd * 1024)
        g.cond_end()
    g.wait(lgkm=0)
    g.barrier()
    g.valu("v_xor_b32", V(v_ex), 4 * 8192, V(v_ex))
    for qd in range(8):
        g.ds_read("ds_read_b128", vS + 4 * qd, 4, v_ex, qd * 1024)
    g.valu("v_and_b32", V(v_t), 31, lane)
    g.salu("s_lshl_b32", S(s_t0), S(s_qg), 5)
    g.valu("v_add_u32", V(v_t), S(s_t0), V(v_t))
    g.valu("v_cmp_gt_u32", "vcc", 112, V(v_t), vcc_w=True)
    g.wait(lgkm=0)
    g.text("  s_and_saveexec_b64 s[46:47], vcc")
    g.hist.append(type(g.hist[-1])("other", set(), set(), set(), set()))
    for role in range(2):
        g.cond_begin(s_role, role)
        kb = vO + 32 * role
        for r in range(32):
            g.valu("v_add_f32", V(vS + r), V(vS + r), V(kb + r))
        g.cond_end()
    for r2 in range(16):
        g.valu("v_cvt_pk_bf16_f32", V(vS + 32 + r2), V(vS + 2 * r2), V(vS + 2 * r2 + 1))
    for tt in range(2):
        for u in range(2):
            g.bstore(vS + 32 + 8 * tt + 4 * u, 4, v_oo, SO, 0, 64 * tt + 32 * u)
    if STAMPS:
        g.wait(vm=0)
    stamp(g)
    stamp_flush(g, 44, 45, s_wave, 0, 1)
    g.text(f"{end}:")
    g.text("  s_endpgm")


def k2(g, name="oproj_kernel"):
    header(g, name)
    end = g.label("END")
    SOo, SWo, SP = 4, 8, 12
    s_wave, s_role, s_qg, s_b, s_nq, s_ks, s_t0, s_t1 = 24, 25, 26, 27, 28, 29, 30, 31
    g.text("  s_load_dwordx2 s[36:37], s[0:1], 32")
    g.text("  s_load_dwordx2 s[44:45], s[0:1], 56")
    g.scmp("s_cmp_ge_u32", S(2), 256)
    g.misc(f"s_cbranch_scc1 {end}")
    vAcc = 0
    vFr = 80
    vTmp = 80
    v_lane = 256 - 16
    v_dma = v_lane + 1
    v_oB = v_dma + 5
    v_wA = v_oB + 2
    v_t, v_t2, v_t3, v_ex, v_po = v_wA + 1, v_wA + 2, v_wA + 3, v_wA + 4, v_wA + 5
    lane = V(v_lane)
    g.valu("v_and_b32", lane, 63, V(0))
    g.valu("v_lshrrev_b32", V(v_t), 6, V(0))
    g.valu("v_readfirstlane_b32", S(s_wave), V(v_t), rdlane=True)
    g.salu("s_lshr_b32", S(s_role), S(s_wave), 2)
    g.salu("s_and_b32", S(s_qg), S(s_wave), 3)
    g.salu("s_and_b32", S(s_ks), S(2), 7)
    g.salu("s_lshr_b32", S(s_t0), S(2), 3)
    g.salu("s_and_b32", S(s_nq), S(s_t0), 3)
    g.salu("s_lshr_b32", S(s_b), S(s_t0), 2)
    g.text("  s_waitcnt lgkmcnt(0)")
    srd(g, SOo, 44, 45, O_BYTES)
    srd(g, SWo, 36, 37, 4096 * 640 * 2)
    g.salu("s_mov_b32", S(s_t0), PART_OFF)
    srd_off(g, SP, 44, 45, s_t0, PART_BYTES)
    BUF = 36864
    for i in range(5):
        g.valu("v_mov_b32", V(v_dma + i), 0)
    g.cond_begin(s_role, 0)
    for i in range(5):
        g.valu("v_lshlrev_b32", V(v_t), 4, lane)
        g.valu("v_add_u32", V(v_t), 1024 * i, V(v_t))
        g.valu("v_mul_u32_u24", V(v_t2), 3277, V(v_t))
        g.valu("v_lshrrev_b32", V(v_t2), 20, V(v_t2))
        g.valu("v_mul_u32_u24", V(v_t3), 320, V(v_t2))
        g.valu("v_sub_u32", V(v_t3), V(v_t), V(v_t3))
        g.valu("v_mul_u32_u24", V(v_t2), 1280, V(v_t2))
        g.valu("v_add_u32", V(v_t2), V(v_t2), V(v_t3))
        g.salu("s_mul_i32", S(s_t0), S(s_nq), 320)
        g.salu("s_add_u32", S(s_t0), S(s_t0), (-1024 * (i & 3)) & 0xFFFFFFFF)
        g.valu("v_add_u32", V(v_dma + i), S(s_t0), V(v_t2))
    g.cond_end()
    g.cond_begin(s_role, 1)
    g.salu("s_mul_i32", S(s_t0), S(s_b), 112)
    g.salu("s_lshl_b32", S(s_t1), S(s_qg), 5)
    g.salu("s_add_u32", S(s_t0), S(s_t0), S(s_t1))
    g.valu("v_lshrrev_b32", V(v_t), 3, lane)
    g.valu("v_add_u32", V(v_t), S(s_t0), V(v_t))
    g.valu("v_lshlrev_b32", V(v_t), 13, V(v_t))
    g.salu("s_lshl_b32", S(s_t0), S(s_ks), 10)
    g.valu("v_add_u32", V(v_t), S(s_t0), V(v_t))
    for i in range(4):
        g.valu("v_lshrrev_b32", V(v_t2), 4, lane)
        g.valu("v_add_u32", V(v_t2), (i & 1) * 4, V(v_t2))
        g.valu("v_xor_b32", V(v_t2), V(v_t2), lane)
        g.valu("v_and_b32", V(v_t2), 7, V(v_t2))
        g.valu("v_lshl_add_u32", V(v_dma + i), V(v_t2), 4, V(v_t))
        if i:
            g.valu("v_add_u32", V(v_dma + i), 8 * i * 8192 - 1024 * i, V(v_dma + i))
    g.cond_end()

    def issue(cc):
        buf = (cc & 3) * BUF
        g.cond_begin(s_role, 0)
        g.salu("s_mul_i32", S(s_t0), S(s_qg), 5120)
        g.salu("s_add_u32", "m0", S(s_t0), buf + 16384)
        g.salu("s_lshl_b32", S(s_t0), S(s_ks), 9)
        g.salu("s_lshl_b32", S(s_t1), S(s_qg), 4)
        g.salu("s_add_u32", S(s_t0), S(s_t0), S(s_t1))
        g.salu("s_add_u32", S(s_t0), S(s_t0), cc * 64)
        g.salu("s_mul_i32", S(s_t0), S(s_t0), 1280)
        for i in range(4):
            g.dma(v_dma + i, SWo, S(s_t0), 1024 * i)
        g.salu("s_add_u32", "m0", "m0", 4096)
        g.dma(v_dma + 4, SWo, S(s_t0), 0)
        g.cond_end()
        g.cond_begin(s_role, 1)
        g.salu("s_lshl_b32", S(s_t0), S(s_qg), 12)
        g.salu("s_add_u32", "m0", S(s_t0), buf)
        g.salu("s_mov_b32", S(s_t1), cc * 128)
        for i in range(4):
            g.dma(v_dma + i, SOo, S(s_t1), 1024 * i)
        g.cond_end()

    if K2STAMP: stamp(g)
    for cc in range(4):
        issue(cc)
    g.valu("v_and_b32", V(v_t), 31, lane)
    g.valu("v_lshrrev_b32", V(v_t2), 5, lane)
    g.salu("s_lshl_b32", S(s_t0), S(s_qg), 5)
    g.valu("v_add_u32", V(v_t), S(s_t0), V(v_t))
    g.valu("v_lshrrev_b32", V(v_ex), 1, V(v_t))
    g.valu("v_and_b32", V(v_ex), 7, V(v_ex))
    g.valu("v_xor_b32", V(v_ex), V(v_ex), V(v_t2))
    g.salu("s_lshl_b32", S(s_t0), S(s_role), 2)
    g.valu("v_xor_b32", V(v_ex), S(s_t0), V(v_ex))
    g.valu("v_lshlrev_b32", V(v_t), 7, V(v_t))
    g.valu("v_lshl_add_u32", V(v_oB), V(v_ex), 4, V(v_t))
    g.valu("v_xor_b32", V(v_oB + 1), 32, V(v_oB))
    g.valu("v_lshrrev_b32", V(v_t), 2, lane)
    g.valu("v_and_b32", V(v_t), 3, V(v_t))
    g.valu("v_lshl_add_u32", V(v_t), V(v_t2), 3, V(v_t))
    g.salu("s_lshl_b32", S(s_t0), S(s_role), 5)
    g.valu("v_add_u32", V(v_t), S(s_t0), V(v_t))
    g.valu("v_mul_u32_u24", V(v_t), 320, V(v_t))
    g.valu("v_and_b32", V(v_t2), 1, lane)
    g.valu("v_lshl_add_u32", V(v_t), V(v_t2), 4, V(v_t))
    g.valu("v_and_b32", V(v_t2), 2, lane)
    g.valu("v_lshl_add_u32", V(v_t), V(v_t2), 2, V(v_t))
    g.valu("v_and_b32", V(v_t2), 16, lane)
    g.valu("v_lshl_add_u32", V(v_t), V(v_t2), 1, V(v_t))
    g.valu("v_add_u32", V(v_wA), 16384, V(v_t))

    curbase = [0]

    def rebase(cc):
        base = (cc & 3) * BUF
        d = base - curbase[0]
        if d:
            for rg in (v_oB, v_oB + 1, v_wA):
                g.valu("v_add_u32", V(rg), d & 0xFFFFFFFF, V(rg))
            curbase[0] = base

    def fr(setn):
        b = vFr + setn * 48
        return dict(B=[b, b + 4], A=[[b + 8 + 4 * (5 * ss + t) for t in range(5)] for ss in range(2)])

    def reads(cc):
        f = fr(cc & 1)
        rebase(cc)
        for ss in range(2):
            g.ds_read("ds_read_b128", f["B"][ss], 4, v_oB + ss, 0)
            for t in range(5):
                for e in range(2):
                    g.ds_read("ds_read_b64_tr_b16", f["A"][ss][t] + 2 * e, 2, v_wA, t * 64 + (16 * ss + 4 * e) * 320)

    def vmwait(nchunks):
        g.cond_begin(s_role, 0)
        g.wait(vm=5 * nchunks)
        g.cond_end()
        g.cond_begin(s_role, 1)
        g.wait(vm=4 * nchunks)
        g.cond_end()

    if K2STAMP: stamp(g)
    vmwait(3)
    g.barrier()
    if K2STAMP: stamp(g)
    reads(0)
    NCH = 8
    for cc in range(NCH):
        g.wait(lgkm=0)
        if cc + 1 < NCH:
            vmwait(min(cc + 3, NCH - 1) - (cc + 1))
            g.barrier()
            if cc + 4 < NCH:
                issue(cc + 4)
            reads(cc + 1)
        f = fr(cc & 1)
        for ss in range(2):
            for t in range(5):
                first = (cc == 0 and ss == 0)
                g.mfma32(vAcc + 16 * t, f["A"][ss][t], f["B"][ss], "0" if first else vAcc + 16 * t)
    if K2STAMP: stamp(g)
    g.barrier()
    g.salu("s_mul_i32", S(s_t0), S(s_qg), 20480)
    g.valu("v_lshlrev_b32", V(v_ex), 4, lane)
    g.valu("v_add_u32", V(v_ex), S(s_t0), V(v_ex))
    g.cond_begin(s_role, 1)
    for qd in range(20):
        g.ds_write("ds_write_b128", v_ex, vAcc + 4 * qd, 4, qd * 1024)
    g.cond_end()
    g.wait(lgkm=0)
    g.barrier()
    g.cond_begin(s_role, 0)
    for qd in range(20):
        g.ds_read("ds_read_b128", vTmp + 4 * qd, 4, v_ex, qd * 1024)
    g.salu("s_lshl_b32", S(s_t0), S(s_ks), 3)
    g.salu("s_add_u32", S(s_t0), S(s_t0), S(s_b))
    g.salu("s_lshl_b32", S(s_t0), S(s_t0), 2)
    g.salu("s_add_u32", S(s_t0), S(s_t0), S(s_nq))
    g.salu("s_lshl_b32", S(s_t0), S(s_t0), 2)
    g.salu("s_add_u32", S(s_t0), S(s_t0), S(s_qg))
    g.salu("s_mul_i32", S(s_t0), S(s_t0), PART_PER_QG)
    g.valu("v_lshlrev_b32", V(v_po), 4, lane)
    g.valu("v_add_u32", V(v_po), S(s_t0), V(v_po))
    for qd in range(20):
        for k in range(4):
            g.valu("v_add_f32", V(vAcc + 4 * qd + k), V(vAcc + 4 * qd + k), V(vTmp + 4 * qd + k))
        if qd < 4:
            g.bstore(vAcc + 4 * qd, 4, v_po, SP, 0, qd * 1024)
        else:
            if qd % 4 == 0:
                g.valu("v_add_u32", V(v_po), 4096, V(v_po))
            g.bstore(vAcc + 4 * qd, 4, v_po, SP, 0, (qd % 4) * 1024)
    g.cond_end()
    if K2STAMP:
        g.wait(vm=0)
        stamp(g)
        stamp_flush(g, 44, 45, s_wave, 200, 201)
    g.text(f"{end}:")
    g.text("  s_endpgm")


def k3(g, name="reduce_kernel"):
    header(g, name)
    end = g.label("END")
    SP, SOut = 4, 8
    g.text("  s_load_dwordx2 s[36:37], s[0:1], 40")
    g.text("  s_load_dwordx2 s[44:45], s[0:1], 56")
    g.scmp("s_cmp_ge_u32", S(2), 160)
    g.misc(f"s_cbranch_scc1 {end}")
    v_lane, v_t, v_t2, v_po, v_oo = 200, 201, 202, 203, 204
    lane = V(v_lane)
    s_wave, s_gw, s_t, s_x, s_qg, s_nq, s_b, s_t0, s_t1 = 24, 25, 26, 27, 28, 29, 30, 31, 32
    g.valu("v_and_b32", lane, 63, V(0))
    g.valu("v_lshrrev_b32", V(v_t), 6, V(0))
    g.valu("v_readfirstlane_b32", S(s_wave), V(v_t), rdlane=True)
    g.salu("s_lshl_b32", S(s_gw), S(2), 2)
    g.salu("s_add_u32", S(s_gw), S(s_gw), S(s_wave))
    g.salu("s_mul_hi_u32", S(s_x), S(s_gw), 0x33333334)
    g.salu("s_mul_i32", S(s_t0), S(s_x), 5)
    g.salu("s_sub_u32", S(s_t), S(s_gw), S(s_t0))
    g.salu("s_and_b32", S(s_qg), S(s_x), 3)
    g.salu("s_lshr_b32", S(s_nq), S(s_x), 2)
    g.salu("s_and_b32", S(s_nq), S(s_nq), 3)
    g.salu("s_lshr_b32", S(s_b), S(s_x), 4)
    g.text("  s_waitcnt lgkmcnt(0)")
    g.salu("s_mov_b32", S(s_t0), PART_OFF)
    srd_off(g, SP, 44, 45, s_t0, PART_BYTES)
    srd(g, SOut, 36, 37, 896 * 640 * 2)
    g.salu("s_mul_i32", S(s_t0), S(s_x), PART_PER_QG)
    g.salu("s_lshl_b32", S(s_t1), S(s_t), 12)
    g.salu("s_add_u32", S(s_t0), S(s_t0), S(s_t1))
    g.valu("v_lshlrev_b32", V(v_po), 4, lane)
    g.valu("v_add_u32", V(v_po), S(s_t0), V(v_po))
    g.valu("v_and_b32", V(v_t), 31, lane)
    g.salu("s_lshl_b32", S(s_t0), S(s_qg), 5)
    g.valu("v_add_u32", V(v_t), S(s_t0), V(v_t))
    g.valu("v_cmp_gt_u32", "vcc", 112, V(v_t), vcc_w=True)
    g.salu("s_mul_i32", S(s_t0), S(s_b), 112)
    g.valu("v_add_u32", V(v_t), S(s_t0), V(v_t))
    g.valu("v_mul_u32_u24", V(v_t), 1280, V(v_t))
    g.valu("v_lshrrev_b32", V(v_t2), 5, lane)
    g.valu("v_lshl_add_u32", V(v_t), V(v_t2), 4, V(v_t))
    g.salu("s_mul_i32", S(s_t0), S(s_nq), 320)
    g.salu("s_lshl_b32", S(s_t1), S(s_t), 6)
    g.salu("s_add_u32", S(s_t0), S(s_t0), S(s_t1))
    g.valu("v_add_u32", V(v_oo), S(s_t0), V(v_t))
    g.text("  s_and_saveexec_b64 s[46:47], vcc")
    g.text(f"  s_cbranch_execz {end}")
    for ks in range(8):
        g.salu("s_mov_b32", S(40 + ks), ks * 128 * PART_PER_QG)
    for ks in range(8):
        for qd in range(4):
            g.bload(16 * ks + 4 * qd, 4, v_po, SP, S(40 + ks), qd * 1024)
    for ks in range(1, 8):
        g.wait(vm=4 * (7 - ks))
        for r in range(16):
            g.valu("v_add_f32", V(r), V(r), V(16 * ks + r))
    for r2 in range(8):
        g.valu("v_cvt_pk_bf16_f32", V(128 + r2), V(2 * r2), V(2 * r2 + 1))
    g.bstore(128, 4, v_oo, SOut, 0, 0)
    g.bstore(132, 4, v_oo, SOut, 0, 32)
    g.text(f"{end}:")
    g.text("  s_endpgm")


HEAD = """; Kernarg layout for this problem (64 bytes, ptrs only, base s[0:1]):
; @launch kernel=attn_kernel grid=(256,1,1) block=(512,1,1) lds=163840
; @launch kernel=oproj_kernel grid=(256,1,1) block=(512,1,1) lds=147456
; @launch kernel=reduce_kernel grid=(160,1,1) block=(256,1,1) lds=0
.amdgcn_target "amdgcn-amd-amdhsa--gfx950"
.text
"""


def main(out):
    parts = [HEAD]
    g = Gen(); g.nlabel = 0
    k1(g); parts.append(g.out())
    g2 = Gen(); g2.nlabel = 100000
    k2(g2); parts.append(g2.out())
    g3 = Gen(); g3.nlabel = 200000
    k3(g3); parts.append(g3.out())
    parts.append('.section .rodata,"a"\n.p2align 6\n')
    parts.append(kd("attn_kernel", 256))
    parts.append(".p2align 6\n" + kd("oproj_kernel", 256))
    parts.append(".p2align 6\n" + kd("reduce_kernel", 208))
    open(out, "w").write("".join(parts))


if __name__ == "__main__":
    if len(sys.argv) > 2 and sys.argv[2] == "stamps":
        STAMPS = True
        QSTAMP = len(sys.argv) > 3 and sys.argv[3] == "q"
        K2STAMP = len(sys.argv) > 3 and sys.argv[3] == "k2"
    main(sys.argv[1] if len(sys.argv) > 1 else "standalone__gqa_block_cached__near_ridge.s")
```

```python
import sys
from gen import Gen, vr, sr, rng
from build import V, S, f32hex, srd, srd_off, header, kd, SCALE_LOG2E, O_BYTES, PART_OFF, PART_PER_QG, PART_BYTES, k3

SLOT = 16384
STAMPS = False
QST = False
NST = [0]
ST0 = 70


def stamp(g):
    if not STAMPS:
        return
    i = NST[0]
    NST[0] += 1
    assert ST0 + i < 92
    g.wait(lgkm=0)
    g.text("  s_memtime s[48:49]")
    g.text("  s_waitcnt lgkmcnt(0)")
    g.text(f"  s_mov_b32 s{ST0 + i}, s48")


def stamp_flush(g, wave_sreg):
    if not STAMPS:
        return
    n = NST[0]
    NST[0] = 0
    g.text("  s_mov_b64 exec, -1")
    g.text("  s_add_u32 s92, s44, 0x4000000")
    g.text("  s_addc_u32 s93, s45, 0")
    g.text("  s_and_b32 s93, s93, 0xffff")
    g.text("  s_mov_b32 s94, 0x1000000")
    g.text("  s_mov_b32 s95, 0x20000")
    g.text("  s_lshl_b32 s48, s2, 3")
    g.text(f"  s_add_u32 s48, s48, s{wave_sreg}")
    g.text("  s_lshl_b32 s48, s48, 7")
    g.text("  v_mov_b32 v200, s48")
    for i in range(n):
        g.text(f"  v_mov_b32 v201, s{ST0 + i}")
        g.text(f"  buffer_store_dword v201, v200, s[92:95], 0 offen offset:{4 * i}")
        g.text("  s_nop 1")


SX, SW, SK, SV, SO, SWO, SP, SD = 4, 8, 12, 16, 20, 56, 60, 64
s_wave, s_role, s_qg, s_b, s_h, s_t0, s_t1, s_wl, s_c, s_r, s_ks, s_nq = 24, 25, 26, 27, 28, 29, 30, 31, 32, 33, 34, 35
vS, vO, vQf, vF = 0, 128, 160, 192
v_lane, v_xB, v_wA, v_dma, v_dmaV, v_kA, v_vA = 224, 225, 227, 230, 234, 235, 243
v_m, v_l, v_mc, v_t, v_t2, v_t3, v_l2, v_oo, v_ex, v_g = 247, 248, 249, 250, 251, 252, 253, 254, 255, 253
v_tch = 254
QBASE = 0
QXB = 6 * SLOT
lane = V(v_lane)


def fused(g, name="attn_kernel"):
    header(g, name)
    end = ".LEND_F"
    g.text("  s_load_dwordx4 s[36:39], s[0:1], 0")
    g.text("  s_load_dwordx4 s[40:43], s[0:1], 16")
    g.text("  s_load_dwordx2 s[46:47], s[0:1], 32")
    g.text("  s_load_dwordx4 s[52:55], s[0:1], 48")
    g.scmp("s_cmp_ge_u32", S(2), 256)
    g.misc(f"s_cbranch_scc1 {end}")
    g.valu("v_and_b32", lane, 63, V(0))
    g.valu("v_lshrrev_b32", V(v_t), 6, V(0))
    g.valu("v_readfirstlane_b32", S(s_wave), V(v_t), rdlane=True)
    g.salu("s_lshr_b32", S(s_role), S(s_wave), 2)
    g.salu("s_and_b32", S(s_qg), S(s_wave), 3)
    g.salu("s_lshr_b32", S(s_b), S(2), 5)
    g.salu("s_and_b32", S(s_h), S(2), 31)
    g.salu("s_and_b32", S(s_ks), S(2), 7)
    g.salu("s_lshr_b32", S(s_nq), S(s_h), 3)
    g.salu("s_mov_b32", S(s_c), f32hex(SCALE_LOG2E))
    g.salu("s_lshl_b32", S(s_wl), S(s_qg), 12)
    g.text("  s_waitcnt lgkmcnt(0)")
    g.salu("s_mov_b32", S(44), S(54))
    g.salu("s_mov_b32", S(45), S(55))
    srd(g, SX, 36, 37, 8 * 112 * 640 * 2)
    srd(g, SW, 42, 43, 640 * 4096 * 2)
    g.salu("s_lshl_b32", S(s_t0), S(2), 17)
    srd_off(g, SK, 38, 39, s_t0, 131072)
    srd_off(g, SV, 40, 41, s_t0, 131072)
    srd(g, SO, 54, 55, 8 * 1024 * 1024)
    srd(g, SWO, 46, 47, 4096 * 640 * 2)
    g.salu("s_mov_b32", S(s_t0), PART_OFF)
    srd_off(g, SP, 54, 55, s_t0, PART_BYTES)
    srd(g, SD, 52, 53, 256)
    g.scmp("s_cmp_lg_u32", S(s_role), 0)
    g.misc("s_cbranch_scc1 .LROLE1")
    hist = list(g.hist)
    prog(g, 0)
    g.text(".LROLE1:")
    g.hist = hist
    g.dsq = []
    prog(g, 1)
    g.text(f"{end}:")
    g.text("  s_endpgm")


def prog(g, role):
    NST[0] = 0
    if role == 0:
        g.salu("s_mul_i32", S(s_t0), S(s_b), 112)
        g.salu("s_lshl_b32", S(s_t1), S(s_qg), 5)
        g.salu("s_add_u32", S(s_t0), S(s_t0), S(s_t1))
        g.valu("v_lshrrev_b32", V(v_t), 2, lane)
        g.valu("v_add_u32", V(v_t), S(s_t0), V(v_t))
        g.valu("v_mul_u32_u24", V(v_t), 1280, V(v_t))
        g.valu("v_lshrrev_b32", V(v_t2), 4, lane)
        g.valu("v_xor_b32", V(v_t2), V(v_t2), lane)
        g.valu("v_and_b32", V(v_t2), 3, V(v_t2))
        g.valu("v_lshl_add_u32", V(v_dma + 0), V(v_t2), 4, V(v_t))
        g.valu("v_add_u32", V(v_dma + 1), 16 * 1280 - 1024, V(v_dma + 0))
        g.valu("v_lshrrev_b32", V(v_t), 4, lane)
        g.valu("v_lshlrev_b32", V(v_t2), 2, V(v_t))
        g.valu("v_xor_b32", V(v_t2), V(v_t2), lane)
        g.valu("v_and_b32", V(v_t2), 15, V(v_t2))
        g.salu("s_lshl_b32", S(s_t0), S(s_qg), 3)
        g.valu("v_add_u32", V(v_t), S(s_t0), V(v_t))
        g.valu("v_lshlrev_b32", V(v_t), 13, V(v_t))
        g.valu("v_lshl_add_u32", V(v_t), V(v_t2), 4, V(v_t))
        g.salu("s_lshl_b32", S(s_t0), S(s_h), 8)
        g.valu("v_add_u32", V(v_dma + 2), S(s_t0), V(v_t))
        g.valu("v_add_u32", V(v_dma + 3), 4 * 8192 - 1024, V(v_dma + 2))
    else:
        g.valu("v_lshrrev_b32", V(v_t), 4, lane)
        for i in range(4):
            g.valu("v_add_u32", V(v_t2), 4 * i, V(v_t))
            g.valu("v_xor_b32", V(v_t2), V(v_t2), lane)
            g.valu("v_and_b32", V(v_t2), 15, V(v_t2))
            g.valu("v_lshlrev_b32", V(v_t2), 4, V(v_t2))
            g.valu("v_lshl_add_u32", V(v_dma + i), V(v_t), 8, V(v_t2))
        g.valu("v_lshlrev_b32", V(v_t2), 2, V(v_t))
        g.valu("v_xor_b32", V(v_t2), V(v_t2), lane)
        g.valu("v_and_b32", V(v_t2), 15, V(v_t2))
        g.valu("v_lshlrev_b32", V(v_t2), 4, V(v_t2))
        g.valu("v_lshl_add_u32", V(v_dmaV), V(v_t), 8, V(v_t2))

    def issue_chunk(c):
        assert role == 0
        buf = QBASE + (c % 10) * SLOT
        g.salu("s_lshl_b32", S(s_t0), S(s_qg), 11)
        g.salu("s_add_u32", "m0", S(s_t0), buf)
        g.salu("s_mov_b32", S(s_t1), c * 64)
        g.dma(v_dma + 0, SX, S(s_t1))
        g.dma(v_dma + 1, SX, S(s_t1), 1024)
        g.salu("s_add_u32", "m0", S(s_t0), buf + 8192)
        g.salu("s_mov_b32", S(s_t1), c * 262144)
        g.dma(v_dma + 2, SW, S(s_t1))
        g.dma(v_dma + 3, SW, S(s_t1), 1024)

    ITEM_SLOT = {0: 0, 1: 1, 2: 2, 3: 3, 4: 4, 5: 5, 6: 8, 7: 9, 8: 6, 9: 7, 10: 0, 11: 1, 12: 2, 13: 3, 14: 4, 15: 5}
    issued = []

    def touch_pair(p):
        if role != 1:
            return
        g.salu("s_lshl_b32", S(s_t1), S(s_qg), 13)
        g.salu("s_add_u32", S(s_t1), S(s_t1), (p & 3) * 32768)
        g.bload(v_t3, 1, v_tch, SK if p < 4 else SV, S(s_t1), 0, " nt")
        issued.append((("t", p), 1))

    def issue_item(it):
        if role != 1:
            return
        base = ITEM_SLOT[it] * SLOT
        g.salu("s_add_u32", "m0", S(s_wl), base)
        g.salu("s_add_u32", S(s_t1), S(s_wl), (it & 7) * SLOT)
        for i in range(4):
            if it < 8:
                g.dma(v_dma + i, SK, S(s_t1), 1024 * i, " nt")
            else:
                g.dma(v_dmaV, SV, S(s_t1), 1024 * i, " nt")
        issued.append((it, 4))

    def wait_item(it):
        if role != 1:
            return
        idx = [i for i, (t, _) in enumerate(issued) if t == it][0]
        g.wait(vm=min(63, sum(n for _, n in issued[idx + 1:])))

    stamp(g)
    if role == 0:
        for c in range(10):
            issue_chunk(c)
    else:
        g.salu("s_lshl_b32", S(s_r), S(s_b), 2)
        g.salu("s_add_u32", S(s_r), S(s_r), S(s_nq))
        g.salu("s_mul_i32", S(s_t0), S(s_r), 280)
        g.salu("s_mul_i32", S(s_t1), S(s_qg), 70)
        g.salu("s_add_u32", S(s_t0), S(s_t0), S(s_t1))
        g.valu("v_add_u32", V(v_t), S(s_t0), lane)
        g.valu("v_lshlrev_b32", V(v_t), 7, V(v_t))
        g.bload(v_t3, 1, v_t, SX, 0, 0)
        g.valu("v_add_u32", V(v_t), 6 * 128, V(v_t))
        g.bload(v_t3, 1, v_t, SX, 0, 0)
        g.salu("s_lshr_b32", S(s_t0), S(s_r), 2)
        g.salu("s_mul_i32", S(s_t0), S(s_t0), 80)
        g.salu("s_mul_i32", S(s_t1), S(s_qg), 20)
        g.salu("s_add_u32", S(s_t0), S(s_t0), S(s_t1))
        g.valu("v_lshrrev_b32", V(v_t), 1, lane)
        g.valu("v_min_u32", V(v_t), 19, V(v_t))
        g.valu("v_add_u32", V(v_t), S(s_t0), V(v_t))
        g.valu("v_lshlrev_b32", V(v_t), 13, V(v_t))
        g.valu("v_and_b32", V(v_t2), 1, lane)
        g.valu("v_lshl_add_u32", V(v_t), V(v_t2), 7, V(v_t))
        g.salu("s_and_b32", S(s_t0), S(s_r), 3)
        g.salu("s_lshl_b32", S(s_t0), S(s_t0), 3)
        g.salu("s_add_u32", S(s_t0), S(s_t0), S(s_ks))
        g.salu("s_lshl_b32", S(s_t0), S(s_t0), 8)
        g.bload(v_t3, 1, v_t, SW, S(s_t0), 0)
        g.valu("v_lshlrev_b32", V(v_tch), 7, lane)

    g.valu("v_and_b32", V(v_t), 31, lane)
    g.valu("v_lshrrev_b32", V(v_t2), 5, lane)
    g.salu("s_lshl_b32", S(s_t0), S(s_qg), 5)
    g.valu("v_add_u32", V(v_g), S(s_t0), V(v_t))
    g.valu("v_lshrrev_b32", V(v_ex), 2, V(v_g))
    g.valu("v_and_b32", V(v_ex), 3, V(v_ex))
    g.valu("v_xor_b32", V(v_ex), V(v_ex), V(v_t2))
    g.valu("v_lshlrev_b32", V(v_g), 6, V(v_g))
    g.valu("v_lshl_add_u32", V(v_xB), V(v_ex), 4, V(v_g))
    g.valu("v_add_u32", V(v_xB), QBASE, V(v_xB))
    g.valu("v_xor_b32", V(v_xB + 1), 32, V(v_xB))
    vr_r, vr_col = v_m, v_l
    g.valu("v_lshrrev_b32", V(vr_r), 2, lane)
    g.valu("v_and_b32", V(vr_r), 3, V(vr_r))
    g.valu("v_and_b32", V(vr_col), 1, lane)
    g.valu("v_lshlrev_b32", V(vr_col), 4, V(vr_col))
    g.valu("v_and_b32", V(v_g), 2, lane)
    g.valu("v_lshl_add_u32", V(vr_col), V(v_g), 2, V(vr_col))
    g.valu("v_and_b32", V(v_g), 16, lane)
    g.valu("v_lshl_add_u32", V(vr_col), V(v_g), 1, V(vr_col))
    QT = [0] if role == 0 else [1, 2, 3]
    g.valu("v_lshl_add_u32", V(v_g), V(v_t2), 3, V(vr_r))
    g.valu("v_lshl_add_u32", V(v_g), V(v_g), 8, V(vr_col))
    g.valu("v_add_u32", V(v_g), QBASE + 8192, V(v_g))
    for i, T in enumerate(QT):
        g.valu("v_xor_b32", V(v_ex), T, V(vr_r))
        g.valu("v_lshl_add_u32", V(v_wA + i), V(v_ex), 6, V(v_g))
    g.valu("v_lshl_add_u32", V(v_g), V(v_t2), 2, V(vr_r))
    if role:
        g.valu("v_add_u32", V(v_g), 32, V(v_g))
    g.valu("v_lshl_add_u32", V(v_g), V(v_g), 8, V(vr_col))
    for t in range(4):
        g.valu("v_xor_b32", V(v_ex), t, V(vr_r))
        g.valu("v_lshl_add_u32", V(v_vA + t), V(v_ex), 6, V(v_g))
    g.valu("v_add_u32", V(v_g), 32 * role, V(v_t))
    g.valu("v_and_b32", V(v_ex), 15, V(v_g))
    g.valu("v_xor_b32", V(v_ex), V(v_ex), V(v_t2))
    g.valu("v_lshlrev_b32", V(v_g), 8, V(v_g))
    g.valu("v_lshl_add_u32", V(v_kA), V(v_ex), 4, V(v_g))
    for s in range(1, 8):
        g.valu("v_xor_b32", V(v_kA + s), s << 5, V(v_kA))

    cur_kbase = [0]
    cur_vbase = [0]

    def k_rebase(it):
        base = (ITEM_SLOT[it] * SLOT // 65536) * 65536
        if base != cur_kbase[0]:
            d = base - cur_kbase[0]
            for s in range(8):
                g.valu("v_add_u32", V(v_kA + s), d & 0xFFFFFFFF, V(v_kA + s))
            cur_kbase[0] = base

    def k_read(it, s, dst):
        off = ITEM_SLOT[it] * SLOT - cur_kbase[0]
        g.ds_read("ds_read_b128", dst + 4 * s, 4, v_kA + s, off)

    def v_rebase(it):
        base = (ITEM_SLOT[it] * SLOT // 65536) * 65536
        if base != cur_vbase[0]:
            d = base - cur_vbase[0]
            for t in range(4):
                g.valu("v_add_u32", V(v_vA + t), d & 0xFFFFFFFF, V(v_vA + t))
            cur_vbase[0] = base

    def v_read(it, u, t):
        off = ITEM_SLOT[it] * SLOT - cur_vbase[0]
        f = vF + 4 * (4 * u + t)
        for e in range(2):
            g.ds_read("ds_read_b64_tr_b16", f + 2 * e, 2, v_vA + t, off + (16 * u + 8 * e) * 256)

    nT = len(QT)
    vQacc = 128
    setsz = 8 + 8 * nT

    def qfr(setn):
        b = setn * setsz
        return dict(B=[b, b + 4], A=[[b + 8 + 4 * (nT * s + i) for i in range(nT)] for s in range(2)])

    qb = [0]

    def q_reads(c):
        f = qfr(c & 1)
        base = ((c % 10) // 4) * 65536
        if base != qb[0]:
            d = (base - qb[0]) & 0xFFFFFFFF
            for rg in [v_xB, v_xB + 1] + [v_wA + i for i in range(nT)]:
                g.valu("v_add_u32", V(rg), d, V(rg))
            qb[0] = base
        off = (c % 10) * SLOT - base
        for s in range(2):
            g.ds_read("ds_read_b128", f["B"][s], 4, v_xB + s, off)
            for i in range(nT):
                for e in range(2):
                    g.ds_read("ds_read_b64_tr_b16", f["A"][s][i] + 2 * e, 2, v_wA + i, off + (16 * s + 4 * e) * 256)

    KREG = {}
    K_ISSUE = {10: [0], 11: [1], 12: [2]}
    K_DRAIN = {}
    T_ISSUE = {}

    stamp(g)
    if role == 0:
        g.wait(vm=36)
    g.barrier()
    stamp(g)
    q_reads(0)
    NCH = 20
    for c in range(NCH):
        g.wait(lgkm=0)
        if c + 1 < NCH:
            if role == 0:
                g.wait(vm=4 * (min(c + 9, NCH - 1) - (c + 1)))
            if c in K_DRAIN:
                wait_item(K_DRAIN[c])
            g.barrier()
            if QST and c in (1, 3, 5, 7, 9, 11, 13, 15, 17):
                stamp(g)
            q_reads(c + 1)
        f = qfr(c & 1)
        for s in range(2):
            for i in range(nT):
                first = (c == 0 and s == 0)
                g.mfma32(vQacc + 16 * i, f["A"][s][i], f["B"][s], "0" if first else vQacc + 16 * i)
        if c in K_DRAIN:
            it = K_DRAIN[c]
            for s in range(8):
                k_read(it, s, KREG[it])
        if role == 0 and c + 10 < NCH:
            issue_chunk(c + 10)
        for p_ in T_ISSUE.get(c, []):
            touch_pair(p_)
        for it in K_ISSUE.get(c, []):
            issue_item(it)

    g.salu("s_lshl_b32", S(s_t0), S(s_qg), 13)
    g.salu("s_add_u32", S(s_t0), S(s_t0), QXB)
    g.valu("v_lshlrev_b32", V(v_ex), 4, lane)
    g.valu("v_add_u32", V(v_ex), S(s_t0), V(v_ex))
    tmpq = 0
    for i, T in enumerate(QT):
        for u in range(2):
            for j in range(4):
                g.valu("v_cvt_pk_bf16_f32", V(tmpq + 8 * i + 4 * u + j), V(vQacc + 16 * i + 8 * u + 2 * j),
                       V(vQacc + 16 * i + 8 * u + 2 * j + 1))
    for i, T in enumerate(QT):
        for u in range(2):
            g.ds_write("ds_write_b128", v_ex, tmpq + 8 * i + 4 * u, 4, (2 * T + u) * 1024)
    g.wait(lgkm=0)
    stamp(g)
    g.barrier()
    issue_item(3)
    issue_item(4)
    for i in range(8):
        g.ds_read("ds_read_b128", vQf + 4 * i, 4, v_ex, i * 1024)
    g.wait(lgkm=0)
    g.barrier()
    stamp(g)
    wait_item(0)
    g.barrier()
    for s in range(8):
        k_read(0, s, vF)

    def maxtile(j, first):
        b = vS + 16 * j
        ops = []
        if first:
            ops.append(lambda: g.valu("v_max3_f32", V(v_m), V(b), V(b + 1), V(b + 2)))
            ops.append(lambda: g.valu("v_max3_f32", V(v_l), V(b + 3), V(b + 4), V(b + 5)))
            k = 6
        else:
            k = 0
        while k + 1 < 16:
            tgt = v_m if (k // 2) % 2 == 0 else v_l
            ops.append(lambda k=k, tgt=tgt: g.valu("v_max3_f32", V(tgt), V(tgt), V(b + k), V(b + k + 1)))
            k += 2
        return ops

    for j in range(8):
        pre = j + 1
        g.wait(lgkm=0)
        wait_item(pre)
        g.barrier()
        if pre < 8:
            k_rebase(pre)
        else:
            v_rebase(8)
        src = KREG[j] if j in KREG else vF
        mx = maxtile(j - 1, j == 1) if j >= 1 else []
        for s in range(8):
            g.mfma32(vS + 16 * j, src + 4 * s, vQf + 4 * s, "0" if s == 0 else vS + 16 * j)
            if pre is not None:
                if pre < 8:
                    k_read(pre, s, vF)
                else:
                    v_read(8, s // 4, s % 4)
            if mx:
                mx.pop(0)()
        while mx:
            mx.pop(0)()
        issue_item(j + 5)
    stamp(g)
    for op in maxtile(7, False):
        op()
    g.valu("v_max_f32", V(v_m), V(v_m), V(v_l))
    g.valu("v_mov_b32", V(v_t), V(v_m))
    g.valu("v_permlane32_swap_b32", V(v_m), V(v_t), permlane=True)
    g.valu("v_max_f32", V(v_m), V(v_m), V(v_t))
    g.valu("v_mul_f32", V(v_mc), S(s_c), V(v_m))
    g.valu("v_sub_f32", V(v_mc), 0, V(v_mc))

    def exp_ops(j, first):
        b = vS + 16 * j
        ops = []
        for r2 in range(8):
            a0, a1 = b + 2 * r2, b + 2 * r2 + 1
            ops.append(lambda a0=a0: g.valu("v_fma_f32", V(a0), V(a0), S(s_c), V(v_mc)))
            ops.append(lambda a1=a1: g.valu("v_fma_f32", V(a1), V(a1), S(s_c), V(v_mc)))
            ops.append(lambda a0=a0: g.valu("v_exp_f32", V(a0), V(a0), trans=True))
            ops.append(lambda a1=a1: g.valu("v_exp_f32", V(a1), V(a1), trans=True))
            if first and r2 == 0:
                ops.append(lambda a0=a0: g.valu("v_mov_b32", V(v_l), V(a0)))
                ops.append(lambda a1=a1: g.valu("v_mov_b32", V(v_l2), V(a1)))
            else:
                ops.append(lambda a0=a0: g.valu("v_add_f32", V(v_l), V(v_l), V(a0)))
                ops.append(lambda a1=a1: g.valu("v_add_f32", V(v_l2), V(v_l2), V(a1)))
            ops.append(lambda a0=a0, a1=a1, d=b + r2: g.valu("v_cvt_pk_bf16_f32", V(d), V(a0), V(a1)))
        return ops

    for op in exp_ops(0, True):
        op()

    stamp(g)
    for j in range(8):
        it = 8 + j
        nxt = it + 1
        g.wait(lgkm=0)
        if nxt < 16:
            wait_item(nxt)
        g.barrier()
        if nxt < 16:
            v_rebase(nxt)
        if j == 5 and role == 1:
            g.salu("s_lshr_b32", S(s_t0), S(s_r), 3)
            g.salu("s_lshl_b32", S(s_t0), S(s_t0), 3)
            g.salu("s_add_u32", S(s_t0), S(s_t0), S(s_ks))
            g.salu("s_mul_i32", S(s_t0), S(s_t0), 163840)
            g.salu("s_and_b32", S(s_t1), S(s_r), 7)
            g.salu("s_mul_i32", S(s_t1), S(s_t1), 160)
            g.valu("v_min_u32", V(v_t), 39, lane)
            g.valu("v_add_u32", V(v_t), S(s_t1), V(v_t))
            g.salu("s_mul_i32", S(s_t1), S(s_qg), 40)
            g.valu("v_add_u32", V(v_t), S(s_t1), V(v_t))
            g.valu("v_lshlrev_b32", V(v_t), 7, V(v_t))
            g.bload(v_xB, 1, v_t, SWO, S(s_t0), 0)
            issued.append((("wo", 0), 1))
        ex = exp_ops(j + 1, False) if j + 1 < 8 else []
        if j == 6:
            def fin_l():
                g.valu("v_add_f32", V(v_l), V(v_l), V(v_l2))
                g.valu("v_mov_b32", V(v_t), V(v_l))
                g.valu("v_permlane32_swap_b32", V(v_l), V(v_t), permlane=True)
                g.valu("v_add_f32", V(v_l), V(v_l), V(v_t))
            ex.append(fin_l)
        per = (len(ex) + 7) // 8
        for i in range(8):
            u, t = i // 4, i % 4
            g.mfma32(vO + 16 * t, vF + 4 * i, vS + 16 * j + 4 * u, "0" if (j == 0 and u == 0) else vO + 16 * t)
            if nxt < 16:
                v_read(nxt, u, t)
            for _ in range(per):
                if ex:
                    ex.pop(0)()
        while ex:
            ex.pop(0)()
        if it + 5 < 16:
            issue_item(it + 5)

    stamp(g)
    XW = 8704
    g.salu("s_mul_i32", S(s_t0), S(s_wave), XW)
    g.valu("v_lshlrev_b32", V(v_ex), 4, lane)
    g.valu("v_add_u32", V(v_ex), S(s_t0), V(v_ex))
    g.valu("v_lshlrev_b32", V(v_t3), 2, lane)
    g.valu("v_add_u32", V(v_t3), S(s_t0), V(v_t3))
    g.ds_write("ds_write_b32", v_t3, v_m, 1, 8192)
    g.ds_write("ds_write_b32", v_t3, v_l, 1, 8192 + 256)
    sb = vO + 32 * (1 - role)
    for qd in range(8):
        g.ds_write("ds_write_b128", v_ex, sb + 4 * qd, 4, qd * 1024)
    g.wait(lgkm=0)
    g.barrier()
    d = (4 * XW) if role == 0 else (-4 * XW) & 0xFFFFFFFF
    g.valu("v_add_u32", V(v_ex), d, V(v_ex))
    g.valu("v_add_u32", V(v_t3), d, V(v_t3))
    g.ds_read("ds_read_b32", v_t, 1, v_t3, 8192)
    g.ds_read("ds_read_b32", v_t2, 1, v_t3, 8192 + 256)
    for qd in range(8):
        g.ds_read("ds_read_b128", vS + 4 * qd, 4, v_ex, qd * 1024)
    g.valu("v_max_f32", V(v_g), V(v_m), V(v_t))
    g.valu("v_sub_f32", V(v_m), V(v_m), V(v_g))
    g.valu("v_sub_f32", V(v_t), V(v_t), V(v_g))
    g.valu("v_mul_f32", V(v_m), S(s_c), V(v_m))
    g.valu("v_mul_f32", V(v_t), S(s_c), V(v_t))
    g.valu("v_exp_f32", V(v_m), V(v_m), trans=True)
    g.valu("v_exp_f32", V(v_t), V(v_t), trans=True)
    g.valu("v_mul_f32", V(v_l), V(v_l), V(v_m))
    g.valu("v_fma_f32", V(v_l), V(v_t2), V(v_t), V(v_l))
    g.valu("v_rcp_f32", V(v_l), V(v_l), trans=True)
    g.valu("v_mul_f32", V(v_m), V(v_m), V(v_l))
    g.valu("v_mul_f32", V(v_t), V(v_t), V(v_l))
    kb = vO + 32 * role
    for r in range(32):
        g.valu("v_mul_f32", V(vS + r), V(vS + r), V(v_t))
        g.valu("v_fma_f32", V(vS + r), V(kb + r), V(v_m), V(vS + r))
    for r2 in range(16):
        g.valu("v_cvt_pk_bf16_f32", V(vS + 32 + r2), V(vS + 2 * r2), V(vS + 2 * r2 + 1))
    g.salu("s_lshl_b32", S(s_t0), S(2), 2)
    g.salu("s_add_u32", S(s_t0), S(s_t0), S(s_qg))
    g.salu("s_lshl_b32", S(s_t0), S(s_t0), 13)
    g.salu("s_add_u32", S(s_t0), S(s_t0), 4096 * role)
    g.valu("v_lshlrev_b32", V(v_oo), 4, lane)
    g.valu("v_add_u32", V(v_oo), S(s_t0), V(v_oo))
    for i in range(4):
        g.bstore(vS + 32 + 4 * i, 4, v_oo, SO, 0, 1024 * i)
    if STAMPS:
        g.wait(vm=0)
    stamp(g)
    stamp_flush(g, s_wave)
    g.text("  s_endpgm")


def k2(g, name="oproj_kernel"):
    header(g, name)
    end = ".LEND_K2"
    g.text("  s_load_dwordx2 s[46:47], s[0:1], 32")
    g.text("  s_load_dwordx2 s[54:55], s[0:1], 56")
    g.scmp("s_cmp_ge_u32", S(2), 256)
    g.misc(f"s_cbranch_scc1 {end}")
    g.valu("v_and_b32", lane, 63, V(0))
    g.valu("v_lshrrev_b32", V(v_t), 6, V(0))
    g.valu("v_readfirstlane_b32", S(s_wave), V(v_t), rdlane=True)
    g.salu("s_lshr_b32", S(s_role), S(s_wave), 2)
    g.salu("s_and_b32", S(s_qg), S(s_wave), 3)
    g.salu("s_lshr_b32", S(s_b), S(2), 5)
    g.salu("s_and_b32", S(s_h), S(2), 31)
    g.salu("s_and_b32", S(s_ks), S(2), 7)
    g.salu("s_lshr_b32", S(s_nq), S(s_h), 3)
    g.text("  s_waitcnt lgkmcnt(0)")
    g.salu("s_mov_b32", S(44), S(54))
    g.salu("s_mov_b32", S(45), S(55))
    srd(g, SO, 54, 55, 8 * 1024 * 1024)
    srd(g, SWO, 46, 47, 4096 * 640 * 2)
    g.salu("s_mov_b32", S(s_t0), PART_OFF)
    srd_off(g, SP, 54, 55, s_t0, PART_BYTES)
    g.scmp("s_cmp_lg_u32", S(s_role), 0)
    g.misc("s_cbranch_scc1 .LK2ROLE1")
    hist = list(g.hist)
    k2prog(g, 0)
    g.text(".LK2ROLE1:")
    g.hist = hist
    g.dsq = []
    k2prog(g, 1)
    g.text(f"{end}:")
    g.text("  s_endpgm")


def k2prog(g, role):
    NST[0] = 0
    stamp(g)
    vB, vAcc, vA = 0, 64, 144
    g.valu("v_lshlrev_b32", V(v_g), 4, lane)
    for hh in range(2):
        g.salu("s_lshl_b32", S(s_t0), S(s_b), 5)
        g.salu("s_add_u32", S(s_t0), S(s_t0), S(s_ks))
        g.salu("s_add_u32", S(s_t0), S(s_t0), 8 * (2 * role + hh))
        g.salu("s_lshl_b32", S(s_t0), S(s_t0), 2)
        g.salu("s_add_u32", S(s_t0), S(s_t0), S(s_qg))
        g.salu("s_lshl_b32", S(s_t0), S(s_t0), 13)
        for s in range(8):
            if s == 4:
                g.salu("s_add_u32", S(s_t0), S(s_t0), 4096)
            g.bload(vB + 4 * (8 * hh + s), 4, v_g, SO, S(s_t0), 1024 * (s & 3))
    v_wd = 204
    for i in range(5):
        g.valu("v_lshlrev_b32", V(v_t), 4, lane)
        g.valu("v_add_u32", V(v_t), 1024 * i, V(v_t))
        g.valu("v_mul_u32_u24", V(v_t2), 3277, V(v_t))
        g.valu("v_lshrrev_b32", V(v_t2), 20, V(v_t2))
        g.valu("v_mul_u32_u24", V(v_t3), 320, V(v_t2))
        g.valu("v_sub_u32", V(v_t3), V(v_t), V(v_t3))
        g.valu("v_mul_u32_u24", V(v_t2), 1280, V(v_t2))
        g.valu("v_add_u32", V(v_t2), V(v_t2), V(v_t3))
        g.salu("s_mul_i32", S(s_t0), S(s_nq), 320)
        g.salu("s_add_u32", S(s_t0), S(s_t0), (-1024 * (i & 3)) & 0xFFFFFFFF)
        g.valu("v_add_u32", V(v_wd + i), S(s_t0), V(v_t2))

    def wo_dma(st):
        g.salu("s_lshl_b32", S(s_t0), S(s_role), 1)
        g.salu("s_add_u32", S(s_t0), S(s_t0), st)
        g.salu("s_lshl_b32", S(s_t1), S(s_t0), 7)
        g.salu("s_lshl_b32", S(s_r), S(s_qg), 5)
        g.salu("s_add_u32", S(s_t1), S(s_t1), S(s_r))
        g.salu("s_mul_i32", S(s_t1), S(s_t1), 320)
        g.salu("s_lshl_b32", S(s_t0), S(s_t0), 3)
        g.salu("s_add_u32", S(s_t0), S(s_t0), S(s_ks))
        g.salu("s_lshl_b32", S(s_t0), S(s_t0), 7)
        g.salu("s_add_u32", S(s_t0), S(s_t0), S(s_r))
        g.salu("s_mul_i32", S(s_t0), S(s_t0), 1280)
        for gi in range(2):
            g.salu("s_add_u32", "m0", S(s_t1), gi * 5120)
            for i in range(4):
                g.dma(v_wd + i, SWO, S(s_t0), 1024 * i)
            g.salu("s_add_u32", "m0", S(s_t1), gi * 5120 + 4096)
            g.dma(v_wd + 4, SWO, S(s_t0), 0)
            if gi == 0:
                g.salu("s_add_u32", S(s_t0), S(s_t0), 16 * 1280)

    wo_dma(0)
    wo_dma(1)
    v_wA2 = v_wA
    g.valu("v_lshrrev_b32", V(v_t2), 5, lane)
    g.valu("v_lshrrev_b32", V(v_t), 2, lane)
    g.valu("v_and_b32", V(v_t), 3, V(v_t))
    g.valu("v_lshl_add_u32", V(v_t), V(v_t2), 3, V(v_t))
    g.valu("v_add_u32", V(v_t), 256 * role, V(v_t))
    g.valu("v_mul_u32_u24", V(v_t), 320, V(v_t))
    g.valu("v_and_b32", V(v_t2), 1, lane)
    g.valu("v_lshl_add_u32", V(v_t), V(v_t2), 4, V(v_t))
    g.valu("v_and_b32", V(v_t2), 2, lane)
    g.valu("v_lshl_add_u32", V(v_t), V(v_t2), 2, V(v_t))
    g.valu("v_and_b32", V(v_t2), 16, lane)
    g.valu("v_lshl_add_u32", V(v_wA2), V(v_t2), 1, V(v_t))
    abase = [0]

    def a_reads(k):
        if k == 8:
            g.valu("v_add_u32", V(v_wA2), 8 * 5120, V(v_wA2))
            abase[0] = 8
        for t in range(5):
            for e in range(2):
                g.ds_read("ds_read_b64_tr_b16", vA + 20 * (k % 3) + 4 * t + 2 * e, 2, v_wA2,
                          (k - abase[0]) * 5120 + t * 64 + 4 * e * 320)

    g.wait(vm=10)
    g.barrier()
    stamp(g)
    a_reads(0)
    a_reads(1)
    for k in range(16):
        if k == 6:
            g.wait(vm=0)
            g.barrier()
        if k + 2 < 16:
            a_reads(k + 2)
        for t in range(5):
            g.mfma32(vAcc + 16 * t, vA + 20 * (k % 3) + 4 * t, vB + 4 * k, "0" if k == 0 else vAcc + 16 * t)
    stamp(g)
    g.wait(lgkm=0)
    g.barrier()
    g.salu("s_mul_i32", S(s_t0), S(s_wave), 10240)
    g.valu("v_lshlrev_b32", V(v_ex), 4, lane)
    g.valu("v_add_u32", V(v_ex), S(s_t0), V(v_ex))
    sendb = vAcc + 40 * (1 - role)
    keepb = vAcc + 40 * role
    for qd in range(10):
        g.ds_write("ds_write_b128", v_ex, sendb + 4 * qd, 4, qd * 1024)
    g.wait(lgkm=0)
    g.barrier()
    d = (4 * 10240) if role == 0 else (-4 * 10240) & 0xFFFFFFFF
    g.valu("v_add_u32", V(v_ex), d, V(v_ex))
    for qd in range(10):
        g.ds_read("ds_read_b128", vB + 4 * qd, 4, v_ex, qd * 1024)
    g.salu("s_lshl_b32", S(s_t0), S(s_ks), 3)
    g.salu("s_add_u32", S(s_t0), S(s_t0), S(s_b))
    g.salu("s_lshl_b32", S(s_t0), S(s_t0), 2)
    g.salu("s_add_u32", S(s_t0), S(s_t0), S(s_nq))
    g.salu("s_lshl_b32", S(s_t0), S(s_t0), 2)
    g.salu("s_add_u32", S(s_t0), S(s_t0), S(s_qg))
    g.salu("s_mul_i32", S(s_t0), S(s_t0), PART_PER_QG)
    g.salu("s_add_u32", S(s_t0), S(s_t0), role * 10240)
    g.valu("v_lshlrev_b32", V(v_g), 4, lane)
    g.valu("v_add_u32", V(v_g), S(s_t0), V(v_g))
    for qd in range(10):
        for k in range(4):
            g.valu("v_add_f32", V(keepb + 4 * qd + k), V(keepb + 4 * qd + k), V(vB + 4 * qd + k))
        if qd and qd % 4 == 0:
            g.valu("v_add_u32", V(v_g), 4096, V(v_g))
        g.bstore(keepb + 4 * qd, 4, v_g, SP, 0, (qd % 4) * 1024)
    if STAMPS:
        g.wait(vm=0)
    stamp(g)
    stamp_flush(g, s_wave)
    g.text("  s_endpgm")


HEAD = """; Kernarg layout for this problem (64 bytes, ptrs only, base s[0:1]):
; @launch kernel=attn_kernel grid=(256,1,1) block=(512,1,1) lds=163840
; @launch kernel=oproj_kernel grid=(256,1,1) block=(512,1,1) lds=163840
; @launch kernel=reduce_kernel grid=(160,1,1) block=(256,1,1) lds=0
.amdgcn_target "amdgcn-amd-amdhsa--gfx950"
.text
"""


def main(out):
    parts = [HEAD]
    g = Gen()
    fused(g)
    parts.append(g.out())
    g2 = Gen()
    g2.nlabel = 100000
    k2(g2)
    parts.append(g2.out())
    g3 = Gen()
    g3.nlabel = 200000
    k3(g3)
    parts.append(g3.out())
    parts.append('.section .rodata,"a"\n.p2align 6\n')
    parts.append(kd("attn_kernel", 256, 100))
    parts.append(".p2align 6\n" + kd("oproj_kernel", 256, 100))
    parts.append(".p2align 6\n" + kd("reduce_kernel", 208))
    open(out, "w").write("".join(parts))


if __name__ == "__main__":
    if len(sys.argv) > 2 and sys.argv[2] == "stamps":
        STAMPS = True
        QST = len(sys.argv) > 3
    main(sys.argv[1] if len(sys.argv) > 1 else "standalone__gqa_block_cached__near_ridge.s")
```

```python
import sys
from gen import Gen, vr, sr, rng
from build import V, S, f32hex, srd, srd_off, header, kd, SCALE_LOG2E, O_BYTES, PART_OFF, PART_PER_QG, PART_BYTES, k3

SLOT = 16384
STAMPS = False
QST = False
NST = [0]
ST0 = 70


def stamp(g):
    if not STAMPS:
        return
    i = NST[0]
    NST[0] += 1
    assert ST0 + i < 92
    g.wait(lgkm=0)
    g.text("  s_memtime s[48:49]")
    g.text("  s_waitcnt lgkmcnt(0)")
    g.text(f"  s_mov_b32 s{ST0 + i}, s48")


def stamp_flush(g, wave_sreg):
    if not STAMPS:
        return
    n = NST[0]
    NST[0] = 0
    g.text("  s_mov_b64 exec, -1")
    g.text("  s_add_u32 s92, s44, 0x4000000")
    g.text("  s_addc_u32 s93, s45, 0")
    g.text("  s_and_b32 s93, s93, 0xffff")
    g.text("  s_mov_b32 s94, 0x1000000")
    g.text("  s_mov_b32 s95, 0x20000")
    g.text("  s_lshl_b32 s48, s2, 3")
    g.text(f"  s_add_u32 s48, s48, s{wave_sreg}")
    g.text("  s_lshl_b32 s48, s48, 7")
    g.text("  v_mov_b32 v200, s48")
    for i in range(n):
        g.text(f"  v_mov_b32 v201, s{ST0 + i}")
        g.text(f"  buffer_store_dword v201, v200, s[92:95], 0 offen offset:{4 * i}")
        g.text("  s_nop 1")


SX, SW, SK, SV, SO, SWO, SP, SD = 4, 8, 12, 16, 20, 56, 60, 64
s_wave, s_role, s_qg, s_b, s_h, s_t0, s_t1, s_wl, s_c, s_r, s_ks, s_nq = 24, 25, 26, 27, 28, 29, 30, 31, 32, 33, 34, 35
vS, vO, vQf, vF = 0, 128, 160, 192
v_lane, v_xB, v_wA, v_dma, v_dmaV, v_kA, v_vA = 224, 225, 227, 230, 234, 235, 243
v_m, v_l, v_mc, v_t, v_t2, v_t3, v_l2, v_oo, v_ex, v_g = 247, 248, 249, 250, 251, 252, 253, 254, 255, 253
v_tch = 254
QBASE = 0
QXB = 6 * SLOT
lane = V(v_lane)


def fused(g, name="attn_kernel"):
    header(g, name)
    end = ".LEND_F"
    g.text("  s_load_dwordx4 s[36:39], s[0:1], 0")
    g.text("  s_load_dwordx4 s[40:43], s[0:1], 16")
    g.text("  s_load_dwordx2 s[46:47], s[0:1], 32")
    g.text("  s_load_dwordx4 s[52:55], s[0:1], 48")
    g.scmp("s_cmp_ge_u32", S(2), 256)
    g.misc(f"s_cbranch_scc1 {end}")
    g.valu("v_and_b32", lane, 63, V(0))
    g.valu("v_lshrrev_b32", V(v_t), 6, V(0))
    g.valu("v_readfirstlane_b32", S(s_wave), V(v_t), rdlane=True)
    g.salu("s_lshr_b32", S(s_role), S(s_wave), 2)
    g.salu("s_and_b32", S(s_qg), S(s_wave), 3)
    g.salu("s_lshr_b32", S(s_b), S(2), 5)
    g.salu("s_and_b32", S(s_h), S(2), 31)
    g.salu("s_and_b32", S(s_ks), S(2), 7)
    g.salu("s_lshr_b32", S(s_nq), S(s_h), 3)
    g.salu("s_mov_b32", S(s_c), f32hex(SCALE_LOG2E))
    g.salu("s_lshl_b32", S(s_wl), S(s_qg), 12)
    g.text("  s_waitcnt lgkmcnt(0)")
    g.salu("s_mov_b32", S(44), S(54))
    g.salu("s_mov_b32", S(45), S(55))
    srd(g, SX, 36, 37, 8 * 112 * 640 * 2)
    srd(g, SW, 42, 43, 640 * 4096 * 2)
    g.salu("s_lshl_b32", S(s_t0), S(2), 17)
    srd_off(g, SK, 38, 39, s_t0, 131072)
    srd_off(g, SV, 40, 41, s_t0, 131072)
    srd(g, SO, 54, 55, 8 * 1024 * 1024)
    srd(g, SWO, 46, 47, 4096 * 640 * 2)
    g.salu("s_mov_b32", S(s_t0), PART_OFF)
    srd_off(g, SP, 54, 55, s_t0, PART_BYTES)
    srd(g, SD, 52, 53, 256)
    g.scmp("s_cmp_lg_u32", S(s_role), 0)
    g.misc("s_cbranch_scc1 .LROLE1")
    hist = list(g.hist)
    prog(g, 0)
    g.text(".LROLE1:")
    g.hist = hist
    g.dsq = []
    prog(g, 1)
    g.text(f"{end}:")
    g.text("  s_endpgm")


def prog(g, role):
    NST[0] = 0
    if role == 0:
        g.salu("s_mul_i32", S(s_t0), S(s_b), 112)
        g.salu("s_lshl_b32", S(s_t1), S(s_qg), 5)
        g.salu("s_add_u32", S(s_t0), S(s_t0), S(s_t1))
        g.valu("v_lshrrev_b32", V(v_t), 2, lane)
        g.valu("v_add_u32", V(v_t), S(s_t0), V(v_t))
        g.valu("v_mul_u32_u24", V(v_t), 1280, V(v_t))
        g.valu("v_lshrrev_b32", V(v_t2), 4, lane)
        g.valu("v_xor_b32", V(v_t2), V(v_t2), lane)
        g.valu("v_and_b32", V(v_t2), 3, V(v_t2))
        g.valu("v_lshl_add_u32", V(v_dma + 0), V(v_t2), 4, V(v_t))
        g.valu("v_add_u32", V(v_dma + 1), 16 * 1280 - 1024, V(v_dma + 0))
        g.valu("v_lshrrev_b32", V(v_t), 4, lane)
        g.valu("v_lshlrev_b32", V(v_t2), 2, V(v_t))
        g.valu("v_xor_b32", V(v_t2), V(v_t2), lane)
        g.valu("v_and_b32", V(v_t2), 15, V(v_t2))
        g.salu("s_lshl_b32", S(s_t0), S(s_qg), 3)
        g.valu("v_add_u32", V(v_t), S(s_t0), V(v_t))
        g.valu("v_lshlrev_b32", V(v_t), 13, V(v_t))
        g.valu("v_lshl_add_u32", V(v_t), V(v_t2), 4, V(v_t))
        g.salu("s_lshl_b32", S(s_t0), S(s_h), 8)
        g.valu("v_add_u32", V(v_dma + 2), S(s_t0), V(v_t))
        g.valu("v_add_u32", V(v_dma + 3), 4 * 8192 - 1024, V(v_dma + 2))
    else:
        g.valu("v_lshrrev_b32", V(v_t), 4, lane)
        for i in range(4):
            g.valu("v_add_u32", V(v_t2), 4 * i, V(v_t))
            g.valu("v_xor_b32", V(v_t2), V(v_t2), lane)
            g.valu("v_and_b32", V(v_t2), 15, V(v_t2))
            g.valu("v_lshlrev_b32", V(v_t2), 4, V(v_t2))
            g.valu("v_lshl_add_u32", V(v_dma + i), V(v_t), 8, V(v_t2))
        g.valu("v_lshlrev_b32", V(v_t2), 2, V(v_t))
        g.valu("v_xor_b32", V(v_t2), V(v_t2), lane)
        g.valu("v_and_b32", V(v_t2), 15, V(v_t2))
        g.valu("v_lshlrev_b32", V(v_t2), 4, V(v_t2))
        g.valu("v_lshl_add_u32", V(v_dmaV), V(v_t), 8, V(v_t2))

    def issue_chunk(c):
        assert role == 0
        buf = QBASE + (c % 10) * SLOT
        g.salu("s_lshl_b32", S(s_t0), S(s_qg), 11)
        g.salu("s_add_u32", "m0", S(s_t0), buf)
        g.salu("s_mov_b32", S(s_t1), c * 64)
        g.dma(v_dma + 0, SX, S(s_t1))
        g.dma(v_dma + 1, SX, S(s_t1), 1024)
        g.salu("s_add_u32", "m0", S(s_t0), buf + 8192)
        g.salu("s_mov_b32", S(s_t1), c * 262144)
        g.dma(v_dma + 2, SW, S(s_t1))
        g.dma(v_dma + 3, SW, S(s_t1), 1024)

    ITEM_SLOT = {0: 0, 1: 1, 2: 2, 3: 3, 4: 4, 5: 5, 6: 8, 7: 9, 8: 6, 9: 7, 10: 0, 11: 1, 12: 2, 13: 3, 14: 4, 15: 5}
    issued = []

    def touch_pair(p):
        if role != 1:
            return
        g.salu("s_lshl_b32", S(s_t1), S(s_qg), 13)
        g.salu("s_add_u32", S(s_t1), S(s_t1), (p & 3) * 32768)
        g.bload(v_t3, 1, v_tch, SK if p < 4 else SV, S(s_t1), 0, " nt")
        issued.append((("t", p), 1))

    def issue_item(it):
        if role != 1:
            return
        base = ITEM_SLOT[it] * SLOT
        g.salu("s_add_u32", "m0", S(s_wl), base)
        g.salu("s_add_u32", S(s_t1), S(s_wl), (it & 7) * SLOT)
        for i in range(4):
            if it < 8:
                g.dma(v_dma + i, SK, S(s_t1), 1024 * i, " nt")
            else:
                g.dma(v_dmaV, SV, S(s_t1), 1024 * i, " nt")
        issued.append((it, 4))

    def wait_item(it):
        if role != 1:
            return
        idx = [i for i, (t, _) in enumerate(issued) if t == it][0]
        g.wait(vm=min(63, sum(n for _, n in issued[idx + 1:])))

    stamp(g)
    if role == 0:
        for c in range(10):
            issue_chunk(c)
    else:
        g.salu("s_lshl_b32", S(s_r), S(s_b), 2)
        g.salu("s_add_u32", S(s_r), S(s_r), S(s_nq))
        g.salu("s_mul_i32", S(s_t0), S(s_r), 280)
        g.salu("s_mul_i32", S(s_t1), S(s_qg), 70)
        g.salu("s_add_u32", S(s_t0), S(s_t0), S(s_t1))
        g.valu("v_add_u32", V(v_t), S(s_t0), lane)
        g.valu("v_lshlrev_b32", V(v_t), 7, V(v_t))
        g.bload(v_t3, 1, v_t, SX, 0, 0)
        g.valu("v_add_u32", V(v_t), 6 * 128, V(v_t))
        g.bload(v_t3, 1, v_t, SX, 0, 0)
        g.salu("s_lshr_b32", S(s_t0), S(s_r), 2)
        g.salu("s_mul_i32", S(s_t0), S(s_t0), 80)
        g.salu("s_mul_i32", S(s_t1), S(s_qg), 20)
        g.salu("s_add_u32", S(s_t0), S(s_t0), S(s_t1))
        g.valu("v_lshrrev_b32", V(v_t), 1, lane)
        g.valu("v_min_u32", V(v_t), 19, V(v_t))
        g.valu("v_add_u32", V(v_t), S(s_t0), V(v_t))
        g.valu("v_lshlrev_b32", V(v_t), 13, V(v_t))
        g.valu("v_and_b32", V(v_t2), 1, lane)
        g.valu("v_lshl_add_u32", V(v_t), V(v_t2), 7, V(v_t))
        g.salu("s_and_b32", S(s_t0), S(s_r), 3)
        g.salu("s_lshl_b32", S(s_t0), S(s_t0), 3)
        g.salu("s_add_u32", S(s_t0), S(s_t0), S(s_ks))
        g.salu("s_lshl_b32", S(s_t0), S(s_t0), 8)
        g.bload(v_t3, 1, v_t, SW, S(s_t0), 0)
        g.valu("v_lshlrev_b32", V(v_tch), 7, lane)

    g.valu("v_and_b32", V(v_t), 31, lane)
    g.valu("v_lshrrev_b32", V(v_t2), 5, lane)
    g.salu("s_lshl_b32", S(s_t0), S(s_qg), 5)
    g.valu("v_add_u32", V(v_g), S(s_t0), V(v_t))
    g.valu("v_lshrrev_b32", V(v_ex), 2, V(v_g))
    g.valu("v_and_b32", V(v_ex), 3, V(v_ex))
    g.valu("v_xor_b32", V(v_ex), V(v_ex), V(v_t2))
    g.valu("v_lshlrev_b32", V(v_g), 6, V(v_g))
    g.valu("v_lshl_add_u32", V(v_xB), V(v_ex), 4, V(v_g))
    g.valu("v_add_u32", V(v_xB), QBASE, V(v_xB))
    g.valu("v_xor_b32", V(v_xB + 1), 32, V(v_xB))
    vr_r, vr_col = v_m, v_l
    g.valu("v_lshrrev_b32", V(vr_r), 2, lane)
    g.valu("v_and_b32", V(vr_r), 3, V(vr_r))
    g.valu("v_and_b32", V(vr_col), 1, lane)
    g.valu("v_lshlrev_b32", V(vr_col), 4, V(vr_col))
    g.valu("v_and_b32", V(v_g), 2, lane)
    g.valu("v_lshl_add_u32", V(vr_col), V(v_g), 2, V(vr_col))
    g.valu("v_and_b32", V(v_g), 16, lane)
    g.valu("v_lshl_add_u32", V(vr_col), V(v_g), 1, V(vr_col))
    QT = [0] if role == 0 else [1, 2, 3]
    g.valu("v_lshl_add_u32", V(v_g), V(v_t2), 3, V(vr_r))
    g.valu("v_lshl_add_u32", V(v_g), V(v_g), 8, V(vr_col))
    g.valu("v_add_u32", V(v_g), QBASE + 8192, V(v_g))
    for i, T in enumerate(QT):
        g.valu("v_xor_b32", V(v_ex), T, V(vr_r))
        g.valu("v_lshl_add_u32", V(v_wA + i), V(v_ex), 6, V(v_g))
    g.valu("v_lshl_add_u32", V(v_g), V(v_t2), 2, V(vr_r))
    if role:
        g.valu("v_add_u32", V(v_g), 32, V(v_g))
    g.valu("v_lshl_add_u32", V(v_g), V(v_g), 8, V(vr_col))
    for t in range(4):
        g.valu("v_xor_b32", V(v_ex), t, V(vr_r))
        g.valu("v_lshl_add_u32", V(v_vA + t), V(v_ex), 6, V(v_g))
    g.valu("v_add_u32", V(v_g), 32 * role, V(v_t))
    g.valu("v_and_b32", V(v_ex), 15, V(v_g))
    g.valu("v_xor_b32", V(v_ex), V(v_ex), V(v_t2))
    g.valu("v_lshlrev_b32", V(v_g), 8, V(v_g))
    g.valu("v_lshl_add_u32", V(v_kA), V(v_ex), 4, V(v_g))
    for s in range(1, 8):
        g.valu("v_xor_b32", V(v_kA + s), s << 5, V(v_kA))

    cur_kbase = [0]
    cur_vbase = [0]

    def k_rebase(it):
        base = (ITEM_SLOT[it] * SLOT // 65536) * 65536
        if base != cur_kbase[0]:
            d = base - cur_kbase[0]
            for s in range(8):
                g.valu("v_add_u32", V(v_kA + s), d & 0xFFFFFFFF, V(v_kA + s))
            cur_kbase[0] = base

    def k_read(it, s, dst):
        off = ITEM_SLOT[it] * SLOT - cur_kbase[0]
        g.ds_read("ds_read_b128", dst + 4 * s, 4, v_kA + s, off)

    def v_rebase(it):
        base = (ITEM_SLOT[it] * SLOT // 65536) * 65536
        if base != cur_vbase[0]:
            d = base - cur_vbase[0]
            for t in range(4):
                g.valu("v_add_u32", V(v_vA + t), d & 0xFFFFFFFF, V(v_vA + t))
            cur_vbase[0] = base

    def v_read(it, u, t):
        off = ITEM_SLOT[it] * SLOT - cur_vbase[0]
        f = vF + 4 * (4 * u + t)
        for e in range(2):
            g.ds_read("ds_read_b64_tr_b16", f + 2 * e, 2, v_vA + t, off + (16 * u + 8 * e) * 256)

    nT = len(QT)
    vQacc = 128
    setsz = 8 + 8 * nT

    def qfr(setn):
        b = setn * setsz
        return dict(B=[b, b + 4], A=[[b + 8 + 4 * (nT * s + i) for i in range(nT)] for s in range(2)])

    qb = [0]

    def q_reads(c):
        f = qfr(c & 1)
        base = ((c % 10) // 4) * 65536
        if base != qb[0]:
            d = (base - qb[0]) & 0xFFFFFFFF
            for rg in [v_xB, v_xB + 1] + [v_wA + i for i in range(nT)]:
                g.valu("v_add_u32", V(rg), d, V(rg))
            qb[0] = base
        off = (c % 10) * SLOT - base
        for s in range(2):
            g.ds_read("ds_read_b128", f["B"][s], 4, v_xB + s, off)
            for i in range(nT):
                for e in range(2):
                    g.ds_read("ds_read_b64_tr_b16", f["A"][s][i] + 2 * e, 2, v_wA + i, off + (16 * s + 4 * e) * 256)

    KREG = {}
    K_ISSUE = {10: [0], 11: [1], 12: [2]}
    K_DRAIN = {}
    T_ISSUE = {}

    stamp(g)
    if role == 0:
        g.wait(vm=36)
    g.barrier()
    stamp(g)
    q_reads(0)
    NCH = 20
    for c in range(NCH):
        g.wait(lgkm=0)
        if c + 1 < NCH:
            if role == 0:
                g.wait(vm=4 * (min(c + 9, NCH - 1) - (c + 1)))
            if c in K_DRAIN:
                wait_item(K_DRAIN[c])
            g.barrier()
            if QST and c in (1, 3, 5, 7, 9, 11, 13, 15, 17):
                stamp(g)
            q_reads(c + 1)
        f = qfr(c & 1)
        for s in range(2):
            for i in range(nT):
                first = (c == 0 and s == 0)
                g.mfma32(vQacc + 16 * i, f["A"][s][i], f["B"][s], "0" if first else vQacc + 16 * i)
        if c in K_DRAIN:
            it = K_DRAIN[c]
            for s in range(8):
                k_read(it, s, KREG[it])
        if role == 0 and c + 10 < NCH:
            issue_chunk(c + 10)
        for p_ in T_ISSUE.get(c, []):
            touch_pair(p_)
        for it in K_ISSUE.get(c, []):
            issue_item(it)

    g.salu("s_lshl_b32", S(s_t0), S(s_qg), 13)
    g.salu("s_add_u32", S(s_t0), S(s_t0), QXB)
    g.valu("v_lshlrev_b32", V(v_ex), 4, lane)
    g.valu("v_add_u32", V(v_ex), S(s_t0), V(v_ex))
    tmpq = 0
    for i, T in enumerate(QT):
        for u in range(2):
            for j in range(4):
                g.valu("v_cvt_pk_bf16_f32", V(tmpq + 8 * i + 4 * u + j), V(vQacc + 16 * i + 8 * u + 2 * j),
                       V(vQacc + 16 * i + 8 * u + 2 * j + 1))
    for i, T in enumerate(QT):
        for u in range(2):
            g.ds_write("ds_write_b128", v_ex, tmpq + 8 * i + 4 * u, 4, (2 * T + u) * 1024)
    g.wait(lgkm=0)
    stamp(g)
    g.barrier()
    issue_item(3)
    issue_item(4)
    for i in range(8):
        g.ds_read("ds_read_b128", vQf + 4 * i, 4, v_ex, i * 1024)
    g.wait(lgkm=0)
    g.barrier()
    stamp(g)
    wait_item(0)
    g.barrier()
    for s in range(8):
        k_read(0, s, vF)

    def maxtile(j, first):
        b = vS + 16 * j
        ops = []
        if first:
            ops.append(lambda: g.valu("v_max3_f32", V(v_m), V(b), V(b + 1), V(b + 2)))
            ops.append(lambda: g.valu("v_max3_f32", V(v_l), V(b + 3), V(b + 4), V(b + 5)))
            k = 6
        else:
            k = 0
        while k + 1 < 16:
            tgt = v_m if (k // 2) % 2 == 0 else v_l
            ops.append(lambda k=k, tgt=tgt: g.valu("v_max3_f32", V(tgt), V(tgt), V(b + k), V(b + k + 1)))
            k += 2
        return ops

    for j in range(8):
        pre = j + 1
        g.wait(lgkm=0)
        wait_item(pre)
        g.barrier()
        if pre < 8:
            k_rebase(pre)
        else:
            v_rebase(8)
        if j == 2 and role == 1:
            g.salu("s_lshr_b32", S(s_t0), S(s_r), 3)
            g.salu("s_lshl_b32", S(s_t0), S(s_t0), 3)
            g.salu("s_add_u32", S(s_t0), S(s_t0), S(s_ks))
            g.salu("s_mul_i32", S(s_t0), S(s_t0), 163840)
            g.salu("s_and_b32", S(s_t1), S(s_r), 7)
            g.salu("s_mul_i32", S(s_t1), S(s_t1), 160)
            g.valu("v_min_u32", V(v_t), 39, lane)
            g.valu("v_add_u32", V(v_t), S(s_t1), V(v_t))
            g.salu("s_mul_i32", S(s_t1), S(s_qg), 40)
            g.valu("v_add_u32", V(v_t), S(s_t1), V(v_t))
            g.valu("v_lshlrev_b32", V(v_t), 7, V(v_t))
            g.bload(v_t3, 1, v_t, SWO, S(s_t0), 0)
            issued.append((("wo", 0), 1))
        src = KREG[j] if j in KREG else vF
        mx = maxtile(j - 1, j == 1) if j >= 1 else []
        for s in range(8):
            g.mfma32(vS + 16 * j, src + 4 * s, vQf + 4 * s, "0" if s == 0 else vS + 16 * j)
            if pre is not None:
                if pre < 8:
                    k_read(pre, s, vF)
                else:
                    v_read(8, s // 4, s % 4)
            if mx:
                mx.pop(0)()
        while mx:
            mx.pop(0)()
        issue_item(j + 5)
    stamp(g)
    for op in maxtile(7, False):
        op()
    g.valu("v_max_f32", V(v_m), V(v_m), V(v_l))
    g.valu("v_mov_b32", V(v_t), V(v_m))
    g.valu("v_permlane32_swap_b32", V(v_m), V(v_t), permlane=True)
    g.valu("v_max_f32", V(v_m), V(v_m), V(v_t))
    g.valu("v_mul_f32", V(v_mc), S(s_c), V(v_m))
    g.valu("v_sub_f32", V(v_mc), 0, V(v_mc))

    def exp_ops(j, first):
        b = vS + 16 * j
        ops = []
        for r2 in range(8):
            a0, a1 = b + 2 * r2, b + 2 * r2 + 1
            ops.append(lambda a0=a0: g.valu("v_fma_f32", V(a0), V(a0), S(s_c), V(v_mc)))
            ops.append(lambda a1=a1: g.valu("v_fma_f32", V(a1), V(a1), S(s_c), V(v_mc)))
            ops.append(lambda a0=a0: g.valu("v_exp_f32", V(a0), V(a0), trans=True))
            ops.append(lambda a1=a1: g.valu("v_exp_f32", V(a1), V(a1), trans=True))
            if first and r2 == 0:
                ops.append(lambda a0=a0: g.valu("v_mov_b32", V(v_l), V(a0)))
                ops.append(lambda a1=a1: g.valu("v_mov_b32", V(v_l2), V(a1)))
            else:
                ops.append(lambda a0=a0: g.valu("v_add_f32", V(v_l), V(v_l), V(a0)))
                ops.append(lambda a1=a1: g.valu("v_add_f32", V(v_l2), V(v_l2), V(a1)))
            ops.append(lambda a0=a0, a1=a1, d=b + r2: g.valu("v_cvt_pk_bf16_f32", V(d), V(a0), V(a1)))
        return ops

    for op in exp_ops(0, True):
        op()

    stamp(g)
    for j in range(8):
        it = 8 + j
        nxt = it + 1
        g.wait(lgkm=0)
        if nxt < 16:
            wait_item(nxt)
        g.barrier()
        if nxt < 16:
            v_rebase(nxt)
        ex = exp_ops(j + 1, False) if j + 1 < 8 else []
        if j == 6:
            def fin_l():
                g.valu("v_add_f32", V(v_l), V(v_l), V(v_l2))
                g.valu("v_mov_b32", V(v_t), V(v_l))
                g.valu("v_permlane32_swap_b32", V(v_l), V(v_t), permlane=True)
                g.valu("v_add_f32", V(v_l), V(v_l), V(v_t))
            ex.append(fin_l)
        per = (len(ex) + 7) // 8
        for i in range(8):
            u, t = i // 4, i % 4
            g.mfma32(vO + 16 * t, vF + 4 * i, vS + 16 * j + 4 * u, "0" if (j == 0 and u == 0) else vO + 16 * t)
            if nxt < 16:
                v_read(nxt, u, t)
            for _ in range(per):
                if ex:
                    ex.pop(0)()
        while ex:
            ex.pop(0)()
        if it + 5 < 16:
            issue_item(it + 5)

    stamp(g)
    XW = 8704
    g.salu("s_mul_i32", S(s_t0), S(s_wave), XW)
    g.valu("v_lshlrev_b32", V(v_ex), 4, lane)
    g.valu("v_add_u32", V(v_ex), S(s_t0), V(v_ex))
    g.valu("v_lshlrev_b32", V(v_t3), 2, lane)
    g.valu("v_add_u32", V(v_t3), S(s_t0), V(v_t3))
    g.ds_write("ds_write_b32", v_t3, v_m, 1, 8192)
    g.ds_write("ds_write_b32", v_t3, v_l, 1, 8192 + 256)
    sb = vO + 32 * (1 - role)
    for qd in range(8):
        g.ds_write("ds_write_b128", v_ex, sb + 4 * qd, 4, qd * 1024)
    g.wait(lgkm=0)
    g.barrier()
    d = (4 * XW) if role == 0 else (-4 * XW) & 0xFFFFFFFF
    g.valu("v_add_u32", V(v_ex), d, V(v_ex))
    g.valu("v_add_u32", V(v_t3), d, V(v_t3))
    g.ds_read("ds_read_b32", v_t, 1, v_t3, 8192)
    g.ds_read("ds_read_b32", v_t2, 1, v_t3, 8192 + 256)
    for qd in range(8):
        g.ds_read("ds_read_b128", vS + 4 * qd, 4, v_ex, qd * 1024)
    g.valu("v_max_f32", V(v_g), V(v_m), V(v_t))
    g.valu("v_sub_f32", V(v_m), V(v_m), V(v_g))
    g.valu("v_sub_f32", V(v_t), V(v_t), V(v_g))
    g.valu("v_mul_f32", V(v_m), S(s_c), V(v_m))
    g.valu("v_mul_f32", V(v_t), S(s_c), V(v_t))
    g.valu("v_exp_f32", V(v_m), V(v_m), trans=True)
    g.valu("v_exp_f32", V(v_t), V(v_t), trans=True)
    g.valu("v_mul_f32", V(v_l), V(v_l), V(v_m))
    g.valu("v_fma_f32", V(v_l), V(v_t2), V(v_t), V(v_l))
    g.valu("v_rcp_f32", V(v_l), V(v_l), trans=True)
    g.valu("v_mul_f32", V(v_m), V(v_m), V(v_l))
    g.valu("v_mul_f32", V(v_t), V(v_t), V(v_l))
    kb = vO + 32 * role
    for r in range(32):
        g.valu("v_mul_f32", V(vS + r), V(vS + r), V(v_t))
        g.valu("v_fma_f32", V(vS + r), V(kb + r), V(v_m), V(vS + r))
    for r2 in range(16):
        g.valu("v_cvt_pk_bf16_f32", V(vS + 32 + r2), V(vS + 2 * r2), V(vS + 2 * r2 + 1))
    g.salu("s_lshl_b32", S(s_t0), S(2), 2)
    g.salu("s_add_u32", S(s_t0), S(s_t0), S(s_qg))
    g.salu("s_lshl_b32", S(s_t0), S(s_t0), 13)
    g.salu("s_add_u32", S(s_t0), S(s_t0), 4096 * role)
    g.valu("v_lshlrev_b32", V(v_oo), 4, lane)
    g.valu("v_add_u32", V(v_oo), S(s_t0), V(v_oo))
    for i in range(4):
        g.bstore(vS + 32 + 4 * i, 4, v_oo, SO, 0, 1024 * i, " sc0 sc1")
    v_wd = 64
    for i in range(5):
        g.valu("v_lshlrev_b32", V(v_t), 4, lane)
        g.valu("v_add_u32", V(v_t), 1024 * i, V(v_t))
        g.valu("v_mul_u32_u24", V(v_t2), 3277, V(v_t))
        g.valu("v_lshrrev_b32", V(v_t2), 20, V(v_t2))
        g.valu("v_mul_u32_u24", V(v_t3), 320, V(v_t2))
        g.valu("v_sub_u32", V(v_t3), V(v_t), V(v_t3))
        g.valu("v_mul_u32_u24", V(v_t2), 1280, V(v_t2))
        g.valu("v_add_u32", V(v_t2), V(v_t2), V(v_t3))
        g.salu("s_mul_i32", S(s_t0), S(s_nq), 320)
        g.salu("s_add_u32", S(s_t0), S(s_t0), (-1024 * (i & 3)) & 0xFFFFFFFF)
        g.valu("v_add_u32", V(v_wd + i), S(s_t0), V(v_t2))
    g.wait(vm=0, lgkm=0)
    g.barrier()
    stamp(g)
    if role == 0:
        skip = f".LNOSIG"
        g.scmp("s_cmp_lg_u32", S(s_wave), 0)
        g.misc(f"s_cbranch_scc1 {skip}")
        g.salu("s_lshl_b32", S(s_t0), S(s_b), 3)
        g.salu("s_add_u32", S(s_t0), S(s_t0), S(s_ks))
        g.salu("s_lshl_b32", S(s_t0), S(s_t0), 2)
        g.valu("v_mov_b32", V(v_ex), S(s_t0))
        g.valu("v_mov_b32", V(v_t), 1)
        g.misc("s_mov_b64 exec, 1")
        g.emit(f"buffer_atomic_add v{v_t}, v{v_ex}, s[{SD}:{SD+3}], 0 offen sc1", "vmem", vr_={v_t, v_ex}, sr_=rng(SD, 4))
        g.misc("s_mov_b64 exec, -1")
        g.text(f"{skip}:")
    g.salu("s_lshr_b32", S(s_t0), S(s_wave), 1)
    g.salu("s_lshl_b32", S(s_t0), S(s_t0), 3)
    g.salu("s_add_u32", S(s_t0), S(s_t0), S(s_ks))
    g.salu("s_lshl_b32", S(s_t0), S(s_t0), 7)
    g.salu("s_and_b32", S(s_t1), S(s_wave), 1)
    g.salu("s_lshl_b32", S(s_t1), S(s_t1), 6)
    g.salu("s_add_u32", S(s_t0), S(s_t0), S(s_t1))
    g.salu("s_mul_i32", S(s_t0), S(s_t0), 1280)
    g.salu("s_mul_i32", S(s_t1), S(s_wave), 20480)
    for gi in range(4):
        g.salu("s_add_u32", "m0", S(s_t1), gi * 5120)
        for i in range(4):
            g.dma(v_wd + i, SWO, S(s_t0), 1024 * i)
        g.salu("s_add_u32", "m0", S(s_t1), gi * 5120 + 4096)
        g.dma(v_wd + 4, SWO, S(s_t0), 0)
        if gi < 3:
            g.salu("s_add_u32", S(s_t0), S(s_t0), 16 * 1280)
    if role == 0:
        skip = ".LNOPOLL"
        g.scmp("s_cmp_lg_u32", S(s_wave), 0)
        g.misc(f"s_cbranch_scc1 {skip}")
        g.salu("s_mov_b32", S(s_t1), 0)
        g.text(".LPOLL:")
        g.emit(f"buffer_load_dword v{v_t}, v{v_ex}, s[{SD}:{SD+3}], 0 offen sc0 sc1", "vmem", vw={v_t}, vr_={v_ex}, sr_=rng(SD, 4))
        g.wait(vm=0)
        g.valu("v_readfirstlane_b32", S(s_t0), V(v_t), rdlane=True)
        g.salu("s_add_u32", S(s_t1), S(s_t1), 1)
        g.scmp("s_cmp_ge_u32", S(s_t0), 4)
        g.misc("s_cbranch_scc1 .LPOLLDONE")
        g.scmp("s_cmp_ge_u32", S(s_t1), 0x400000)
        g.misc("s_cbranch_scc1 .LPOLLDONE")
        g.misc("s_sleep 1")
        g.misc("s_branch .LPOLL")
        g.text(".LPOLLDONE:")
        g.text(f"{skip}:")
    g.wait(vm=0)
    g.barrier()
    stamp(g)

    vB, vAcc, vA = 0, 64, 144
    g.valu("v_lshrrev_b32", V(v_t2), 5, lane)
    g.valu("v_lshlrev_b32", V(v_g), 4, lane)
    for hh in range(2):
        g.salu("s_lshl_b32", S(s_t0), S(s_b), 5)
        g.salu("s_add_u32", S(s_t0), S(s_t0), S(s_ks))
        g.salu("s_add_u32", S(s_t0), S(s_t0), 8 * (2 * role + hh))
        g.salu("s_lshl_b32", S(s_t0), S(s_t0), 2)
        g.salu("s_add_u32", S(s_t0), S(s_t0), S(s_qg))
        g.salu("s_lshl_b32", S(s_t0), S(s_t0), 13)
        for s in range(8):
            if s == 4:
                g.salu("s_add_u32", S(s_t0), S(s_t0), 4096)
            g.bload(vB + 4 * (8 * hh + s), 4, v_g, SO, S(s_t0), 1024 * (s & 3), " sc0 sc1")
    v_wA2 = v_wA
    g.valu("v_lshrrev_b32", V(v_t), 2, lane)
    g.valu("v_and_b32", V(v_t), 3, V(v_t))
    g.valu("v_lshl_add_u32", V(v_t), V(v_t2), 3, V(v_t))
    g.valu("v_add_u32", V(v_t), 256 * role, V(v_t))
    g.valu("v_mul_u32_u24", V(v_t), 320, V(v_t))
    g.valu("v_and_b32", V(v_t2), 1, lane)
    g.valu("v_lshl_add_u32", V(v_t), V(v_t2), 4, V(v_t))
    g.valu("v_and_b32", V(v_t2), 2, lane)
    g.valu("v_lshl_add_u32", V(v_t), V(v_t2), 2, V(v_t))
    g.valu("v_and_b32", V(v_t2), 16, lane)
    g.valu("v_lshl_add_u32", V(v_wA2), V(v_t2), 1, V(v_t))
    abase = [0]

    def a_reads(k):
        if k == 8:
            g.valu("v_add_u32", V(v_wA2), 8 * 5120, V(v_wA2))
            abase[0] = 8
        for t in range(5):
            for e in range(2):
                g.ds_read("ds_read_b64_tr_b16", vA + 20 * (k % 3) + 4 * t + 2 * e, 2, v_wA2,
                          (k - abase[0]) * 5120 + t * 64 + 4 * e * 320)

    a_reads(0)
    a_reads(1)
    for k in range(16):
        if k + 2 < 16:
            a_reads(k + 2)
        g.wait(vm=15 - k)
        for t in range(5):
            g.mfma32(vAcc + 16 * t, vA + 20 * (k % 3) + 4 * t, vB + 4 * k, "0" if k == 0 else vAcc + 16 * t)
    stamp(g)
    g.wait(lgkm=0)
    g.barrier()
    g.salu("s_mul_i32", S(s_t0), S(s_wave), 10240)
    g.valu("v_lshlrev_b32", V(v_ex), 4, lane)
    g.valu("v_add_u32", V(v_ex), S(s_t0), V(v_ex))
    sendb = vAcc + 40 * (1 - role)
    keepb = vAcc + 40 * role
    for qd in range(10):
        g.ds_write("ds_write_b128", v_ex, sendb + 4 * qd, 4, qd * 1024)
    g.wait(lgkm=0)
    g.barrier()
    d = (4 * 10240) if role == 0 else (-4 * 10240) & 0xFFFFFFFF
    g.valu("v_add_u32", V(v_ex), d, V(v_ex))
    for qd in range(10):
        g.ds_read("ds_read_b128", vB + 4 * qd, 4, v_ex, qd * 1024)
    g.salu("s_lshl_b32", S(s_t0), S(s_ks), 3)
    g.salu("s_add_u32", S(s_t0), S(s_t0), S(s_b))
    g.salu("s_lshl_b32", S(s_t0), S(s_t0), 2)
    g.salu("s_add_u32", S(s_t0), S(s_t0), S(s_nq))
    g.salu("s_lshl_b32", S(s_t0), S(s_t0), 2)
    g.salu("s_add_u32", S(s_t0), S(s_t0), S(s_qg))
    g.salu("s_mul_i32", S(s_t0), S(s_t0), PART_PER_QG)
    g.salu("s_add_u32", S(s_t0), S(s_t0), role * 10240)
    g.valu("v_lshlrev_b32", V(v_g), 4, lane)
    g.valu("v_add_u32", V(v_g), S(s_t0), V(v_g))
    for qd in range(10):
        for k in range(4):
            g.valu("v_add_f32", V(keepb + 4 * qd + k), V(keepb + 4 * qd + k), V(vB + 4 * qd + k))
        if qd and qd % 4 == 0:
            g.valu("v_add_u32", V(v_g), 4096, V(v_g))
        g.bstore(keepb + 4 * qd, 4, v_g, SP, 0, (qd % 4) * 1024)
    if STAMPS:
        g.wait(vm=0)
    stamp(g)
    stamp_flush(g, s_wave)
    g.text("  s_endpgm")


HEAD = """; Kernarg layout for this problem (64 bytes, ptrs only, base s[0:1]):
; @launch kernel=attn_kernel grid=(256,1,1) block=(512,1,1) lds=163840
; @launch kernel=reduce_kernel grid=(160,1,1) block=(256,1,1) lds=0
.amdgcn_target "amdgcn-amd-amdhsa--gfx950"
.text
"""


def main(out):
    parts = [HEAD]
    g = Gen()
    fused(g)
    parts.append(g.out())
    g3 = Gen()
    g3.nlabel = 200000
    k3(g3)
    parts.append(g3.out())
    parts.append('.section .rodata,"a"\n.p2align 6\n')
    parts.append(kd("attn_kernel", 256, 100))
    parts.append(".p2align 6\n" + kd("reduce_kernel", 208))
    open(out, "w").write("".join(parts))


if __name__ == "__main__":
    if len(sys.argv) > 2 and sys.argv[2] == "stamps":
        STAMPS = True
        QST = len(sys.argv) > 3
    main(sys.argv[1] if len(sys.argv) > 1 else "standalone__gqa_block_cached__near_ridge.s")
```

```python
import sys
from gen import Gen, vr, sr, rng
from build import V, S, f32hex, srd, srd_off, header, kd, SCALE_LOG2E, O_BYTES, PART_OFF, PART_PER_QG
PART_BYTES = 8 * 128 * 10240

SLOT = 16384
STAMPS = False
QST = False
NST = [0]
ST0 = 70


def stamp(g):
    if not STAMPS:
        return
    i = NST[0]
    NST[0] += 1
    assert ST0 + i < 92
    g.wait(lgkm=0)
    g.text("  s_memtime s[48:49]")
    g.text("  s_waitcnt lgkmcnt(0)")
    g.text(f"  s_mov_b32 s{ST0 + i}, s48")


def stamp_flush(g, wave_sreg):
    if not STAMPS:
        return
    n = NST[0]
    NST[0] = 0
    g.text("  s_mov_b64 exec, -1")
    g.text("  s_add_u32 s92, s44, 0x4000000")
    g.text("  s_addc_u32 s93, s45, 0")
    g.text("  s_and_b32 s93, s93, 0xffff")
    g.text("  s_mov_b32 s94, 0x1000000")
    g.text("  s_mov_b32 s95, 0x20000")
    g.text("  s_lshl_b32 s48, s2, 3")
    g.text(f"  s_add_u32 s48, s48, s{wave_sreg}")
    g.text("  s_lshl_b32 s48, s48, 7")
    g.text("  v_mov_b32 v200, s48")
    for i in range(n):
        g.text(f"  v_mov_b32 v201, s{ST0 + i}")
        g.text(f"  buffer_store_dword v201, v200, s[92:95], 0 offen offset:{4 * i}")
        g.text("  s_nop 1")


SX, SW, SK, SV, SO, SWO, SP, SD = 4, 8, 12, 16, 20, 56, 60, 64
s_wave, s_role, s_qg, s_b, s_h, s_t0, s_t1, s_wl, s_c, s_r, s_ks, s_nq = 24, 25, 26, 27, 28, 29, 30, 31, 32, 33, 34, 35
vS, vO, vQf, vF = 0, 128, 160, 192
v_lane, v_xB, v_wA, v_dma, v_dmaV, v_kA, v_vA = 224, 225, 227, 230, 234, 235, 243
v_m, v_l, v_mc, v_t, v_t2, v_t3, v_l2, v_oo, v_ex, v_g = 247, 248, 249, 250, 251, 252, 253, 254, 255, 253
v_tch = 254
QBASE = 0
QXB = 6 * SLOT
lane = V(v_lane)


def fused(g, name="attn_kernel"):
    header(g, name)
    end = ".LEND_F"
    g.text("  s_load_dwordx4 s[36:39], s[0:1], 0")
    g.text("  s_load_dwordx4 s[40:43], s[0:1], 16")
    g.text("  s_load_dwordx2 s[46:47], s[0:1], 32")
    g.text("  s_load_dwordx4 s[52:55], s[0:1], 48")
    g.scmp("s_cmp_ge_u32", S(2), 256)
    g.misc(f"s_cbranch_scc1 {end}")
    g.valu("v_and_b32", lane, 63, V(0))
    g.valu("v_lshrrev_b32", V(v_t), 6, V(0))
    g.valu("v_readfirstlane_b32", S(s_wave), V(v_t), rdlane=True)
    g.salu("s_lshr_b32", S(s_role), S(s_wave), 2)
    g.salu("s_and_b32", S(s_qg), S(s_wave), 3)
    g.salu("s_lshr_b32", S(s_b), S(2), 5)
    g.salu("s_and_b32", S(s_h), S(2), 31)
    g.salu("s_and_b32", S(s_ks), S(2), 7)
    g.salu("s_lshr_b32", S(s_nq), S(s_h), 3)
    g.salu("s_mov_b32", S(s_c), f32hex(SCALE_LOG2E))
    g.salu("s_lshl_b32", S(s_wl), S(s_qg), 12)
    g.text("  s_waitcnt lgkmcnt(0)")
    g.salu("s_mov_b32", S(44), S(54))
    g.salu("s_mov_b32", S(45), S(55))
    srd(g, SX, 36, 37, 8 * 112 * 640 * 2)
    srd(g, SW, 42, 43, 640 * 4096 * 2)
    g.salu("s_lshl_b32", S(s_t0), S(2), 17)
    srd_off(g, SK, 38, 39, s_t0, 131072)
    srd_off(g, SV, 40, 41, s_t0, 131072)
    srd(g, SO, 54, 55, 8 * 1024 * 1024)
    srd(g, SWO, 46, 47, 4096 * 640 * 2)
    g.salu("s_mov_b32", S(s_t0), PART_OFF)
    srd_off(g, SP, 54, 55, s_t0, PART_BYTES)
    srd(g, SD, 52, 53, 256)
    g.scmp("s_cmp_lg_u32", S(s_role), 0)
    g.misc("s_cbranch_scc1 .LROLE1")
    hist = list(g.hist)
    prog(g, 0)
    g.text(".LROLE1:")
    g.hist = hist
    g.dsq = []
    prog(g, 1)
    g.text(f"{end}:")
    g.text("  s_endpgm")


def prog(g, role):
    NST[0] = 0
    if role == 0:
        g.salu("s_mul_i32", S(s_t0), S(s_b), 112)
        g.salu("s_lshl_b32", S(s_t1), S(s_qg), 5)
        g.salu("s_add_u32", S(s_t0), S(s_t0), S(s_t1))
        g.valu("v_lshrrev_b32", V(v_t), 2, lane)
        g.valu("v_add_u32", V(v_t), S(s_t0), V(v_t))
        g.valu("v_mul_u32_u24", V(v_t), 1280, V(v_t))
        g.valu("v_lshrrev_b32", V(v_t2), 4, lane)
        g.valu("v_xor_b32", V(v_t2), V(v_t2), lane)
        g.valu("v_and_b32", V(v_t2), 3, V(v_t2))
        g.valu("v_lshl_add_u32", V(v_dma + 0), V(v_t2), 4, V(v_t))
        g.valu("v_add_u32", V(v_dma + 1), 16 * 1280 - 1024, V(v_dma + 0))
        g.valu("v_lshrrev_b32", V(v_t), 4, lane)
        g.valu("v_lshlrev_b32", V(v_t2), 2, V(v_t))
        g.valu("v_xor_b32", V(v_t2), V(v_t2), lane)
        g.valu("v_and_b32", V(v_t2), 15, V(v_t2))
        g.salu("s_lshl_b32", S(s_t0), S(s_qg), 3)
        g.valu("v_add_u32", V(v_t), S(s_t0), V(v_t))
        g.valu("v_lshlrev_b32", V(v_t), 13, V(v_t))
        g.valu("v_lshl_add_u32", V(v_t), V(v_t2), 4, V(v_t))
        g.salu("s_lshl_b32", S(s_t0), S(s_h), 8)
        g.valu("v_add_u32", V(v_dma + 2), S(s_t0), V(v_t))
        g.valu("v_add_u32", V(v_dma + 3), 4 * 8192 - 1024, V(v_dma + 2))
    else:
        g.valu("v_lshrrev_b32", V(v_t), 4, lane)
        for i in range(4):
            g.valu("v_add_u32", V(v_t2), 4 * i, V(v_t))
            g.valu("v_xor_b32", V(v_t2), V(v_t2), lane)
            g.valu("v_and_b32", V(v_t2), 15, V(v_t2))
            g.valu("v_lshlrev_b32", V(v_t2), 4, V(v_t2))
            g.valu("v_lshl_add_u32", V(v_dma + i), V(v_t), 8, V(v_t2))
        g.valu("v_lshlrev_b32", V(v_t2), 2, V(v_t))
        g.valu("v_xor_b32", V(v_t2), V(v_t2), lane)
        g.valu("v_and_b32", V(v_t2), 15, V(v_t2))
        g.valu("v_lshlrev_b32", V(v_t2), 4, V(v_t2))
        g.valu("v_lshl_add_u32", V(v_dmaV), V(v_t), 8, V(v_t2))

    def issue_chunk(c):
        assert role == 0
        buf = QBASE + (c % 10) * SLOT
        g.salu("s_lshl_b32", S(s_t0), S(s_qg), 11)
        g.salu("s_add_u32", "m0", S(s_t0), buf)
        g.salu("s_mov_b32", S(s_t1), c * 64)
        g.dma(v_dma + 0, SX, S(s_t1))
        g.dma(v_dma + 1, SX, S(s_t1), 1024)
        g.salu("s_add_u32", "m0", S(s_t0), buf + 8192)
        g.salu("s_mov_b32", S(s_t1), c * 262144)
        g.dma(v_dma + 2, SW, S(s_t1))
        g.dma(v_dma + 3, SW, S(s_t1), 1024)

    ITEM_SLOT = {0: 0, 1: 1, 2: 2, 3: 3, 4: 4, 5: 5, 6: 8, 7: 9, 8: 6, 9: 7, 10: 0, 11: 1, 12: 2, 13: 3, 14: 4, 15: 5}
    issued = []

    def touch_pair(p):
        if role != 1:
            return
        g.salu("s_lshl_b32", S(s_t1), S(s_qg), 13)
        g.salu("s_add_u32", S(s_t1), S(s_t1), (p & 3) * 32768)
        g.bload(v_t3, 1, v_tch, SK if p < 4 else SV, S(s_t1), 0, " nt")
        issued.append((("t", p), 1))

    def issue_item(it):
        if role != 1:
            return
        base = ITEM_SLOT[it] * SLOT
        g.salu("s_add_u32", "m0", S(s_wl), base)
        g.salu("s_add_u32", S(s_t1), S(s_wl), (it & 7) * SLOT)
        for i in range(4):
            if it < 8:
                g.dma(v_dma + i, SK, S(s_t1), 1024 * i, " nt")
            else:
                g.dma(v_dmaV, SV, S(s_t1), 1024 * i, " nt")
        issued.append((it, 4))

    def wait_item(it):
        if role != 1:
            return
        idx = [i for i, (t, _) in enumerate(issued) if t == it][0]
        g.wait(vm=min(63, sum(n for _, n in issued[idx + 1:])))

    stamp(g)
    if role == 0:
        for c in range(10):
            issue_chunk(c)
    else:
        g.salu("s_lshl_b32", S(s_r), S(s_b), 2)
        g.salu("s_add_u32", S(s_r), S(s_r), S(s_nq))
        g.salu("s_mul_i32", S(s_t0), S(s_r), 280)
        g.salu("s_mul_i32", S(s_t1), S(s_qg), 70)
        g.salu("s_add_u32", S(s_t0), S(s_t0), S(s_t1))
        g.valu("v_add_u32", V(v_t), S(s_t0), lane)
        g.valu("v_lshlrev_b32", V(v_t), 7, V(v_t))
        g.bload(v_t3, 1, v_t, SX, 0, 0)
        g.valu("v_add_u32", V(v_t), 6 * 128, V(v_t))
        g.bload(v_t3, 1, v_t, SX, 0, 0)
        g.salu("s_lshr_b32", S(s_t0), S(s_r), 2)
        g.salu("s_mul_i32", S(s_t0), S(s_t0), 80)
        g.salu("s_mul_i32", S(s_t1), S(s_qg), 20)
        g.salu("s_add_u32", S(s_t0), S(s_t0), S(s_t1))
        g.valu("v_lshrrev_b32", V(v_t), 1, lane)
        g.valu("v_min_u32", V(v_t), 19, V(v_t))
        g.valu("v_add_u32", V(v_t), S(s_t0), V(v_t))
        g.valu("v_lshlrev_b32", V(v_t), 13, V(v_t))
        g.valu("v_and_b32", V(v_t2), 1, lane)
        g.valu("v_lshl_add_u32", V(v_t), V(v_t2), 7, V(v_t))
        g.salu("s_and_b32", S(s_t0), S(s_r), 3)
        g.salu("s_lshl_b32", S(s_t0), S(s_t0), 3)
        g.salu("s_add_u32", S(s_t0), S(s_t0), S(s_ks))
        g.salu("s_lshl_b32", S(s_t0), S(s_t0), 8)
        g.bload(v_t3, 1, v_t, SW, S(s_t0), 0)
        g.valu("v_lshlrev_b32", V(v_tch), 7, lane)

    g.valu("v_and_b32", V(v_t), 31, lane)
    g.valu("v_lshrrev_b32", V(v_t2), 5, lane)
    g.salu("s_lshl_b32", S(s_t0), S(s_qg), 5)
    g.valu("v_add_u32", V(v_g), S(s_t0), V(v_t))
    g.valu("v_lshrrev_b32", V(v_ex), 2, V(v_g))
    g.valu("v_and_b32", V(v_ex), 3, V(v_ex))
    g.valu("v_xor_b32", V(v_ex), V(v_ex), V(v_t2))
    g.valu("v_lshlrev_b32", V(v_g), 6, V(v_g))
    g.valu("v_lshl_add_u32", V(v_xB), V(v_ex), 4, V(v_g))
    g.valu("v_add_u32", V(v_xB), QBASE, V(v_xB))
    g.valu("v_xor_b32", V(v_xB + 1), 32, V(v_xB))
    vr_r, vr_col = v_m, v_l
    g.valu("v_lshrrev_b32", V(vr_r), 2, lane)
    g.valu("v_and_b32", V(vr_r), 3, V(vr_r))
    g.valu("v_and_b32", V(vr_col), 1, lane)
    g.valu("v_lshlrev_b32", V(vr_col), 4, V(vr_col))
    g.valu("v_and_b32", V(v_g), 2, lane)
    g.valu("v_lshl_add_u32", V(vr_col), V(v_g), 2, V(vr_col))
    g.valu("v_and_b32", V(v_g), 16, lane)
    g.valu("v_lshl_add_u32", V(vr_col), V(v_g), 1, V(vr_col))
    QT = [0] if role == 0 else [1, 2, 3]
    g.valu("v_lshl_add_u32", V(v_g), V(v_t2), 3, V(vr_r))
    g.valu("v_lshl_add_u32", V(v_g), V(v_g), 8, V(vr_col))
    g.valu("v_add_u32", V(v_g), QBASE + 8192, V(v_g))
    for i, T in enumerate(QT):
        g.valu("v_xor_b32", V(v_ex), T, V(vr_r))
        g.valu("v_lshl_add_u32", V(v_wA + i), V(v_ex), 6, V(v_g))
    g.valu("v_lshl_add_u32", V(v_g), V(v_t2), 2, V(vr_r))
    if role:
        g.valu("v_add_u32", V(v_g), 32, V(v_g))
    g.valu("v_lshl_add_u32", V(v_g), V(v_g), 8, V(vr_col))
    for t in range(4):
        g.valu("v_xor_b32", V(v_ex), t, V(vr_r))
        g.valu("v_lshl_add_u32", V(v_vA + t), V(v_ex), 6, V(v_g))
    g.valu("v_add_u32", V(v_g), 32 * role, V(v_t))
    g.valu("v_and_b32", V(v_ex), 15, V(v_g))
    g.valu("v_xor_b32", V(v_ex), V(v_ex), V(v_t2))
    g.valu("v_lshlrev_b32", V(v_g), 8, V(v_g))
    g.valu("v_lshl_add_u32", V(v_kA), V(v_ex), 4, V(v_g))
    for s in range(1, 8):
        g.valu("v_xor_b32", V(v_kA + s), s << 5, V(v_kA))

    cur_kbase = [0]
    cur_vbase = [0]

    def k_rebase(it):
        base = (ITEM_SLOT[it] * SLOT // 65536) * 65536
        if base != cur_kbase[0]:
            d = base - cur_kbase[0]
            for s in range(8):
                g.valu("v_add_u32", V(v_kA + s), d & 0xFFFFFFFF, V(v_kA + s))
            cur_kbase[0] = base

    def k_read(it, s, dst):
        off = ITEM_SLOT[it] * SLOT - cur_kbase[0]
        g.ds_read("ds_read_b128", dst + 4 * s, 4, v_kA + s, off)

    def v_rebase(it):
        base = (ITEM_SLOT[it] * SLOT // 65536) * 65536
        if base != cur_vbase[0]:
            d = base - cur_vbase[0]
            for t in range(4):
                g.valu("v_add_u32", V(v_vA + t), d & 0xFFFFFFFF, V(v_vA + t))
            cur_vbase[0] = base

    def v_read(it, u, t):
        off = ITEM_SLOT[it] * SLOT - cur_vbase[0]
        f = vF + 4 * (4 * u + t)
        for e in range(2):
            g.ds_read("ds_read_b64_tr_b16", f + 2 * e, 2, v_vA + t, off + (16 * u + 8 * e) * 256)

    nT = len(QT)
    vQacc = 128
    setsz = 8 + 8 * nT

    def qfr(setn):
        b = setn * setsz
        return dict(B=[b, b + 4], A=[[b + 8 + 4 * (nT * s + i) for i in range(nT)] for s in range(2)])

    qb = [0]

    def q_reads(c):
        f = qfr(c & 1)
        base = ((c % 10) // 4) * 65536
        if base != qb[0]:
            d = (base - qb[0]) & 0xFFFFFFFF
            for rg in [v_xB, v_xB + 1] + [v_wA + i for i in range(nT)]:
                g.valu("v_add_u32", V(rg), d, V(rg))
            qb[0] = base
        off = (c % 10) * SLOT - base
        for s in range(2):
            g.ds_read("ds_read_b128", f["B"][s], 4, v_xB + s, off)
            for i in range(nT):
                for e in range(2):
                    g.ds_read("ds_read_b64_tr_b16", f["A"][s][i] + 2 * e, 2, v_wA + i, off + (16 * s + 4 * e) * 256)

    KREG = {}
    K_ISSUE = {10: [0], 11: [1], 12: [2]}
    K_DRAIN = {}
    T_ISSUE = {}

    stamp(g)
    if role == 0:
        g.wait(vm=36)
    g.barrier()
    stamp(g)
    q_reads(0)
    NCH = 20
    for c in range(NCH):
        g.wait(lgkm=0)
        if c + 1 < NCH:
            if role == 0:
                g.wait(vm=4 * (min(c + 9, NCH - 1) - (c + 1)))
            if c in K_DRAIN:
                wait_item(K_DRAIN[c])
            g.barrier()
            if QST and c in (1, 3, 5, 7, 9, 11, 13, 15, 17):
                stamp(g)
            q_reads(c + 1)
        f = qfr(c & 1)
        for s in range(2):
            for i in range(nT):
                first = (c == 0 and s == 0)
                g.mfma32(vQacc + 16 * i, f["A"][s][i], f["B"][s], "0" if first else vQacc + 16 * i)
        if c in K_DRAIN:
            it = K_DRAIN[c]
            for s in range(8):
                k_read(it, s, KREG[it])
        if role == 0 and c + 10 < NCH:
            issue_chunk(c + 10)
        for p_ in T_ISSUE.get(c, []):
            touch_pair(p_)
        for it in K_ISSUE.get(c, []):
            issue_item(it)

    g.salu("s_lshl_b32", S(s_t0), S(s_qg), 13)
    g.salu("s_add_u32", S(s_t0), S(s_t0), QXB)
    g.valu("v_lshlrev_b32", V(v_ex), 4, lane)
    g.valu("v_add_u32", V(v_ex), S(s_t0), V(v_ex))
    tmpq = 0
    for i, T in enumerate(QT):
        for u in range(2):
            for j in range(4):
                g.valu("v_cvt_pk_bf16_f32", V(tmpq + 8 * i + 4 * u + j), V(vQacc + 16 * i + 8 * u + 2 * j),
                       V(vQacc + 16 * i + 8 * u + 2 * j + 1))
    for i, T in enumerate(QT):
        for u in range(2):
            g.ds_write("ds_write_b128", v_ex, tmpq + 8 * i + 4 * u, 4, (2 * T + u) * 1024)
    g.wait(lgkm=0)
    stamp(g)
    g.barrier()
    issue_item(3)
    issue_item(4)
    for i in range(8):
        g.ds_read("ds_read_b128", vQf + 4 * i, 4, v_ex, i * 1024)
    g.wait(lgkm=0)
    g.barrier()
    stamp(g)
    wait_item(0)
    g.barrier()
    for s in range(8):
        k_read(0, s, vF)

    def maxtile(j, first):
        b = vS + 16 * j
        ops = []
        if first:
            ops.append(lambda: g.valu("v_max3_f32", V(v_m), V(b), V(b + 1), V(b + 2)))
            ops.append(lambda: g.valu("v_max3_f32", V(v_l), V(b + 3), V(b + 4), V(b + 5)))
            k = 6
        else:
            k = 0
        while k + 1 < 16:
            tgt = v_m if (k // 2) % 2 == 0 else v_l
            ops.append(lambda k=k, tgt=tgt: g.valu("v_max3_f32", V(tgt), V(tgt), V(b + k), V(b + k + 1)))
            k += 2
        return ops

    for j in range(8):
        pre = j + 1
        g.wait(lgkm=0)
        wait_item(pre)
        g.barrier()
        if pre < 8:
            k_rebase(pre)
        else:
            v_rebase(8)
        src = KREG[j] if j in KREG else vF
        mx = maxtile(j - 1, j == 1) if j >= 1 else []
        for s in range(8):
            g.mfma32(vS + 16 * j, src + 4 * s, vQf + 4 * s, "0" if s == 0 else vS + 16 * j)
            if pre is not None:
                if pre < 8:
                    k_read(pre, s, vF)
                else:
                    v_read(8, s // 4, s % 4)
            if mx:
                mx.pop(0)()
        while mx:
            mx.pop(0)()
        issue_item(j + 5)
    stamp(g)
    for op in maxtile(7, False):
        op()
    g.valu("v_max_f32", V(v_m), V(v_m), V(v_l))
    g.valu("v_mov_b32", V(v_t), V(v_m))
    g.valu("v_permlane32_swap_b32", V(v_m), V(v_t), permlane=True)
    g.valu("v_max_f32", V(v_m), V(v_m), V(v_t))
    g.valu("v_mul_f32", V(v_mc), S(s_c), V(v_m))
    g.valu("v_sub_f32", V(v_mc), 0, V(v_mc))

    def exp_ops(j, first):
        b = vS + 16 * j
        ops = []
        for r2 in range(8):
            a0, a1 = b + 2 * r2, b + 2 * r2 + 1
            ops.append(lambda a0=a0: g.valu("v_fma_f32", V(a0), V(a0), S(s_c), V(v_mc)))
            ops.append(lambda a1=a1: g.valu("v_fma_f32", V(a1), V(a1), S(s_c), V(v_mc)))
            ops.append(lambda a0=a0: g.valu("v_exp_f32", V(a0), V(a0), trans=True))
            ops.append(lambda a1=a1: g.valu("v_exp_f32", V(a1), V(a1), trans=True))
            if first and r2 == 0:
                ops.append(lambda a0=a0: g.valu("v_mov_b32", V(v_l), V(a0)))
                ops.append(lambda a1=a1: g.valu("v_mov_b32", V(v_l2), V(a1)))
            else:
                ops.append(lambda a0=a0: g.valu("v_add_f32", V(v_l), V(v_l), V(a0)))
                ops.append(lambda a1=a1: g.valu("v_add_f32", V(v_l2), V(v_l2), V(a1)))
            ops.append(lambda a0=a0, a1=a1, d=b + r2: g.valu("v_cvt_pk_bf16_f32", V(d), V(a0), V(a1)))
        return ops

    for op in exp_ops(0, True):
        op()

    stamp(g)
    for j in range(8):
        it = 8 + j
        nxt = it + 1
        g.wait(lgkm=0)
        if nxt < 16:
            wait_item(nxt)
        g.barrier()
        if nxt < 16:
            v_rebase(nxt)
        if j == 5 and role == 1:
            g.salu("s_lshr_b32", S(s_t0), S(s_r), 3)
            g.salu("s_lshl_b32", S(s_t0), S(s_t0), 3)
            g.salu("s_add_u32", S(s_t0), S(s_t0), S(s_ks))
            g.salu("s_mul_i32", S(s_t0), S(s_t0), 163840)
            g.salu("s_and_b32", S(s_t1), S(s_r), 7)
            g.salu("s_mul_i32", S(s_t1), S(s_t1), 160)
            g.valu("v_min_u32", V(v_t), 39, lane)
            g.valu("v_add_u32", V(v_t), S(s_t1), V(v_t))
            g.salu("s_mul_i32", S(s_t1), S(s_qg), 40)
            g.valu("v_add_u32", V(v_t), S(s_t1), V(v_t))
            g.valu("v_lshlrev_b32", V(v_t), 7, V(v_t))
            g.bload(v_xB, 1, v_t, SWO, S(s_t0), 0)
            issued.append((("wo", 0), 1))
        ex = exp_ops(j + 1, False) if j + 1 < 8 else []
        if j == 6:
            def fin_l():
                g.valu("v_add_f32", V(v_l), V(v_l), V(v_l2))
                g.valu("v_mov_b32", V(v_t), V(v_l))
                g.valu("v_permlane32_swap_b32", V(v_l), V(v_t), permlane=True)
                g.valu("v_add_f32", V(v_l), V(v_l), V(v_t))
            ex.append(fin_l)
        per = (len(ex) + 7) // 8
        for i in range(8):
            u, t = i // 4, i % 4
            g.mfma32(vO + 16 * t, vF + 4 * i, vS + 16 * j + 4 * u, "0" if (j == 0 and u == 0) else vO + 16 * t)
            if nxt < 16:
                v_read(nxt, u, t)
            for _ in range(per):
                if ex:
                    ex.pop(0)()
        while ex:
            ex.pop(0)()
        if it + 5 < 16:
            issue_item(it + 5)

    stamp(g)
    XW = 8704
    g.salu("s_mul_i32", S(s_t0), S(s_wave), XW)
    g.valu("v_lshlrev_b32", V(v_ex), 4, lane)
    g.valu("v_add_u32", V(v_ex), S(s_t0), V(v_ex))
    g.valu("v_lshlrev_b32", V(v_t3), 2, lane)
    g.valu("v_add_u32", V(v_t3), S(s_t0), V(v_t3))
    g.ds_write("ds_write_b32", v_t3, v_m, 1, 8192)
    g.ds_write("ds_write_b32", v_t3, v_l, 1, 8192 + 256)
    sb = vO + 32 * (1 - role)
    for qd in range(8):
        g.ds_write("ds_write_b128", v_ex, sb + 4 * qd, 4, qd * 1024)
    g.wait(lgkm=0)
    g.barrier()
    d = (4 * XW) if role == 0 else (-4 * XW) & 0xFFFFFFFF
    g.valu("v_add_u32", V(v_ex), d, V(v_ex))
    g.valu("v_add_u32", V(v_t3), d, V(v_t3))
    g.ds_read("ds_read_b32", v_t, 1, v_t3, 8192)
    g.ds_read("ds_read_b32", v_t2, 1, v_t3, 8192 + 256)
    for qd in range(8):
        g.ds_read("ds_read_b128", vS + 4 * qd, 4, v_ex, qd * 1024)
    g.valu("v_max_f32", V(v_g), V(v_m), V(v_t))
    g.valu("v_sub_f32", V(v_m), V(v_m), V(v_g))
    g.valu("v_sub_f32", V(v_t), V(v_t), V(v_g))
    g.valu("v_mul_f32", V(v_m), S(s_c), V(v_m))
    g.valu("v_mul_f32", V(v_t), S(s_c), V(v_t))
    g.valu("v_exp_f32", V(v_m), V(v_m), trans=True)
    g.valu("v_exp_f32", V(v_t), V(v_t), trans=True)
    g.valu("v_mul_f32", V(v_l), V(v_l), V(v_m))
    g.valu("v_fma_f32", V(v_l), V(v_t2), V(v_t), V(v_l))
    g.valu("v_rcp_f32", V(v_l), V(v_l), trans=True)
    g.valu("v_mul_f32", V(v_m), V(v_m), V(v_l))
    g.valu("v_mul_f32", V(v_t), V(v_t), V(v_l))
    kb = vO + 32 * role
    for r in range(32):
        g.valu("v_mul_f32", V(vS + r), V(vS + r), V(v_t))
        g.valu("v_fma_f32", V(vS + r), V(kb + r), V(v_m), V(vS + r))
    for r2 in range(16):
        g.valu("v_cvt_pk_bf16_f32", V(vS + 32 + r2), V(vS + 2 * r2), V(vS + 2 * r2 + 1))
    g.salu("s_lshl_b32", S(s_t0), S(2), 2)
    g.salu("s_add_u32", S(s_t0), S(s_t0), S(s_qg))
    g.salu("s_lshl_b32", S(s_t0), S(s_t0), 13)
    g.salu("s_add_u32", S(s_t0), S(s_t0), 4096 * role)
    g.valu("v_lshlrev_b32", V(v_oo), 4, lane)
    g.valu("v_add_u32", V(v_oo), S(s_t0), V(v_oo))
    for i in range(4):
        g.bstore(vS + 32 + 4 * i, 4, v_oo, SO, 0, 1024 * i)
    if STAMPS:
        g.wait(vm=0)
    stamp(g)
    stamp_flush(g, s_wave)
    g.text("  s_endpgm")


def k2(g, name="oproj_kernel"):
    header(g, name)
    end = ".LEND_K2"
    g.text("  s_load_dwordx2 s[46:47], s[0:1], 32")
    g.text("  s_load_dwordx2 s[54:55], s[0:1], 56")
    g.scmp("s_cmp_ge_u32", S(2), 256)
    g.misc(f"s_cbranch_scc1 {end}")
    g.valu("v_and_b32", lane, 63, V(0))
    g.valu("v_lshrrev_b32", V(v_t), 6, V(0))
    g.valu("v_readfirstlane_b32", S(s_wave), V(v_t), rdlane=True)
    g.salu("s_lshr_b32", S(s_role), S(s_wave), 2)
    g.salu("s_and_b32", S(s_qg), S(s_wave), 3)
    g.salu("s_lshr_b32", S(s_b), S(2), 5)
    g.salu("s_and_b32", S(s_h), S(2), 31)
    g.salu("s_and_b32", S(s_ks), S(2), 7)
    g.salu("s_lshr_b32", S(s_nq), S(s_h), 3)
    g.text("  s_waitcnt lgkmcnt(0)")
    g.salu("s_mov_b32", S(44), S(54))
    g.salu("s_mov_b32", S(45), S(55))
    srd(g, SO, 54, 55, 8 * 1024 * 1024)
    srd(g, SWO, 46, 47, 4096 * 640 * 2)
    g.salu("s_mov_b32", S(s_t0), PART_OFF)
    srd_off(g, SP, 54, 55, s_t0, PART_BYTES)
    g.scmp("s_cmp_lg_u32", S(s_role), 0)
    g.misc("s_cbranch_scc1 .LK2ROLE1")
    hist = list(g.hist)
    k2prog(g, 0)
    g.text(".LK2ROLE1:")
    g.hist = hist
    g.dsq = []
    k2prog(g, 1)
    g.text(f"{end}:")
    g.text("  s_endpgm")


def k2prog(g, role):
    NST[0] = 0
    stamp(g)
    vB, vAcc, vA = 0, 64, 144
    g.valu("v_lshlrev_b32", V(v_g), 4, lane)
    for hh in range(2):
        g.salu("s_lshl_b32", S(s_t0), S(s_b), 5)
        g.salu("s_add_u32", S(s_t0), S(s_t0), S(s_ks))
        g.salu("s_add_u32", S(s_t0), S(s_t0), 8 * (2 * role + hh))
        g.salu("s_lshl_b32", S(s_t0), S(s_t0), 2)
        g.salu("s_add_u32", S(s_t0), S(s_t0), S(s_qg))
        g.salu("s_lshl_b32", S(s_t0), S(s_t0), 13)
        for s in range(8):
            if s == 4:
                g.salu("s_add_u32", S(s_t0), S(s_t0), 4096)
            g.bload(vB + 4 * (8 * hh + s), 4, v_g, SO, S(s_t0), 1024 * (s & 3))
    v_wd = 204
    for i in range(5):
        g.valu("v_lshlrev_b32", V(v_t), 4, lane)
        g.valu("v_add_u32", V(v_t), 1024 * i, V(v_t))
        g.valu("v_mul_u32_u24", V(v_t2), 3277, V(v_t))
        g.valu("v_lshrrev_b32", V(v_t2), 20, V(v_t2))
        g.valu("v_mul_u32_u24", V(v_t3), 320, V(v_t2))
        g.valu("v_sub_u32", V(v_t3), V(v_t), V(v_t3))
        g.valu("v_mul_u32_u24", V(v_t2), 1280, V(v_t2))
        g.valu("v_add_u32", V(v_t2), V(v_t2), V(v_t3))
        g.salu("s_mul_i32", S(s_t0), S(s_nq), 320)
        g.salu("s_add_u32", S(s_t0), S(s_t0), (-1024 * (i & 3)) & 0xFFFFFFFF)
        g.valu("v_add_u32", V(v_wd + i), S(s_t0), V(v_t2))

    def wo_dma(st):
        g.salu("s_lshl_b32", S(s_t0), S(s_role), 1)
        g.salu("s_add_u32", S(s_t0), S(s_t0), st)
        g.salu("s_lshl_b32", S(s_t1), S(s_t0), 7)
        g.salu("s_lshl_b32", S(s_r), S(s_qg), 5)
        g.salu("s_add_u32", S(s_t1), S(s_t1), S(s_r))
        g.salu("s_mul_i32", S(s_t1), S(s_t1), 320)
        g.salu("s_lshl_b32", S(s_t0), S(s_t0), 3)
        g.salu("s_add_u32", S(s_t0), S(s_t0), S(s_ks))
        g.salu("s_lshl_b32", S(s_t0), S(s_t0), 7)
        g.salu("s_add_u32", S(s_t0), S(s_t0), S(s_r))
        g.salu("s_mul_i32", S(s_t0), S(s_t0), 1280)
        for gi in range(2):
            g.salu("s_add_u32", "m0", S(s_t1), gi * 5120)
            for i in range(4):
                g.dma(v_wd + i, SWO, S(s_t0), 1024 * i)
            g.salu("s_add_u32", "m0", S(s_t1), gi * 5120 + 4096)
            g.dma(v_wd + 4, SWO, S(s_t0), 0)
            if gi == 0:
                g.salu("s_add_u32", S(s_t0), S(s_t0), 16 * 1280)

    wo_dma(0)
    wo_dma(1)
    v_wA2 = v_wA
    g.valu("v_lshrrev_b32", V(v_t2), 5, lane)
    g.valu("v_lshrrev_b32", V(v_t), 2, lane)
    g.valu("v_and_b32", V(v_t), 3, V(v_t))
    g.valu("v_lshl_add_u32", V(v_t), V(v_t2), 3, V(v_t))
    g.valu("v_add_u32", V(v_t), 256 * role, V(v_t))
    g.valu("v_mul_u32_u24", V(v_t), 320, V(v_t))
    g.valu("v_and_b32", V(v_t2), 1, lane)
    g.valu("v_lshl_add_u32", V(v_t), V(v_t2), 4, V(v_t))
    g.valu("v_and_b32", V(v_t2), 2, lane)
    g.valu("v_lshl_add_u32", V(v_t), V(v_t2), 2, V(v_t))
    g.valu("v_and_b32", V(v_t2), 16, lane)
    g.valu("v_lshl_add_u32", V(v_wA2), V(v_t2), 1, V(v_t))
    abase = [0]

    def a_reads(k):
        if k == 8:
            g.valu("v_add_u32", V(v_wA2), 8 * 5120, V(v_wA2))
            abase[0] = 8
        for t in range(5):
            for e in range(2):
                g.ds_read("ds_read_b64_tr_b16", vA + 20 * (k % 3) + 4 * t + 2 * e, 2, v_wA2,
                          (k - abase[0]) * 5120 + t * 64 + 4 * e * 320)

    g.wait(vm=10)
    g.barrier()
    stamp(g)
    a_reads(0)
    a_reads(1)
    for k in range(16):
        if k == 6:
            g.wait(vm=0)
            g.barrier()
        if k + 2 < 16:
            a_reads(k + 2)
        for t in range(5):
            g.mfma32(vAcc + 16 * t, vA + 20 * (k % 3) + 4 * t, vB + 4 * k, "0" if k == 0 else vAcc + 16 * t)
    stamp(g)
    g.wait(lgkm=0)
    g.barrier()
    g.salu("s_mul_i32", S(s_t0), S(s_wave), 10240)
    g.valu("v_lshlrev_b32", V(v_ex), 4, lane)
    g.valu("v_add_u32", V(v_ex), S(s_t0), V(v_ex))
    sendb = vAcc + 40 * (1 - role)
    keepb = vAcc + 40 * role
    for qd in range(10):
        g.ds_write("ds_write_b128", v_ex, sendb + 4 * qd, 4, qd * 1024)
    g.wait(lgkm=0)
    g.barrier()
    d = (4 * 10240) if role == 0 else (-4 * 10240) & 0xFFFFFFFF
    g.valu("v_add_u32", V(v_ex), d, V(v_ex))
    for qd in range(10):
        g.ds_read("ds_read_b128", vB + 4 * qd, 4, v_ex, qd * 1024)
    g.salu("s_lshl_b32", S(s_t0), S(s_ks), 3)
    g.salu("s_add_u32", S(s_t0), S(s_t0), S(s_b))
    g.salu("s_lshl_b32", S(s_t0), S(s_t0), 2)
    g.salu("s_add_u32", S(s_t0), S(s_t0), S(s_nq))
    g.salu("s_lshl_b32", S(s_t0), S(s_t0), 2)
    g.salu("s_add_u32", S(s_t0), S(s_t0), S(s_qg))
    g.salu("s_mul_i32", S(s_t0), S(s_t0), 10240)
    g.salu("s_add_u32", S(s_t0), S(s_t0), role * 5120)
    g.valu("v_lshlrev_b32", V(v_g), 4, lane)
    g.valu("v_add_u32", V(v_g), S(s_t0), V(v_g))
    for r in range(40):
        g.valu("v_add_f32", V(keepb + r), V(keepb + r), V(vB + r))
    for q5 in range(5):
        for j in range(4):
            g.valu("v_cvt_pk_bf16_f32", V(vB + 40 + 4 * q5 + j), V(keepb + 8 * q5 + 2 * j), V(keepb + 8 * q5 + 2 * j + 1))
        if q5 == 4:
            g.valu("v_add_u32", V(v_g), 4096, V(v_g))
        g.bstore(vB + 40 + 4 * q5, 4, v_g, SP, 0, (q5 % 4) * 1024)
    if STAMPS:
        g.wait(vm=0)
    stamp(g)
    stamp_flush(g, s_wave)
    g.text("  s_endpgm")


def k3(g, name="reduce_kernel"):
    header(g, name)
    end = ".LEND_K3"
    SPp, SOut = 4, 8
    g.text("  s_load_dwordx2 s[36:37], s[0:1], 40")
    g.text("  s_load_dwordx2 s[44:45], s[0:1], 56")
    g.scmp("s_cmp_ge_u32", S(2), 160)
    g.misc(f"s_cbranch_scc1 {end}")
    vl, vt, vt2, vpo, voo = 100, 101, 102, 103, 104
    ln = V(vl)
    sw, sgw, st, sx, sqg, snq, sb, st0, st1 = 24, 25, 26, 27, 28, 29, 30, 31, 32
    g.valu("v_and_b32", ln, 63, V(0))
    g.valu("v_lshrrev_b32", V(vt), 6, V(0))
    g.valu("v_readfirstlane_b32", S(sw), V(vt), rdlane=True)
    g.salu("s_lshl_b32", S(sgw), S(2), 2)
    g.salu("s_add_u32", S(sgw), S(sgw), S(sw))
    g.salu("s_mul_hi_u32", S(sx), S(sgw), 0x33333334)
    g.salu("s_mul_i32", S(st0), S(sx), 5)
    g.salu("s_sub_u32", S(st), S(sgw), S(st0))
    g.salu("s_and_b32", S(sqg), S(sx), 3)
    g.salu("s_lshr_b32", S(snq), S(sx), 2)
    g.salu("s_and_b32", S(snq), S(snq), 3)
    g.salu("s_lshr_b32", S(sb), S(sx), 4)
    g.text("  s_waitcnt lgkmcnt(0)")
    g.salu("s_mov_b32", S(st0), PART_OFF)
    srd_off(g, SPp, 44, 45, st0, PART_BYTES)
    srd(g, SOut, 36, 37, 896 * 640 * 2)
    g.salu("s_mul_i32", S(st0), S(sx), 10240)
    g.salu("s_lshl_b32", S(st1), S(st), 11)
    g.salu("s_add_u32", S(st0), S(st0), S(st1))
    g.valu("v_lshlrev_b32", V(vpo), 4, ln)
    g.valu("v_add_u32", V(vpo), S(st0), V(vpo))
    g.valu("v_and_b32", V(vt), 31, ln)
    g.salu("s_lshl_b32", S(st0), S(sqg), 5)
    g.valu("v_add_u32", V(vt), S(st0), V(vt))
    g.valu("v_cmp_gt_u32", "vcc", 112, V(vt), vcc_w=True)
    g.salu("s_mul_i32", S(st0), S(sb), 112)
    g.valu("v_add_u32", V(vt), S(st0), V(vt))
    g.valu("v_mul_u32_u24", V(vt), 1280, V(vt))
    g.valu("v_lshrrev_b32", V(vt2), 5, ln)
    g.valu("v_lshl_add_u32", V(vt), V(vt2), 4, V(vt))
    g.salu("s_mul_i32", S(st0), S(snq), 320)
    g.salu("s_lshl_b32", S(st1), S(st), 6)
    g.salu("s_add_u32", S(st0), S(st0), S(st1))
    g.valu("v_add_u32", V(voo), S(st0), V(vt))
    g.misc("s_and_saveexec_b64 s[46:47], vcc")
    g.misc(f"s_cbranch_execz {end}")
    for ks in range(8):
        g.salu("s_mov_b32", S(52 + ks), ks * 128 * 10240)
    for ks in range(8):
        for u in range(2):
            g.bload(8 * ks + 4 * u, 4, vpo, SPp, S(52 + ks), u * 1024)
    for ks in range(8):
        g.wait(vm=2 * (7 - ks))
        for r in range(8):
            src = 8 * ks + r
            if ks == 0:
                g.valu("v_lshlrev_b32", V(64 + 2 * r), 16, V(src))
                g.valu("v_and_b32", V(64 + 2 * r + 1), 0xFFFF0000, V(src))
            else:
                g.valu("v_lshlrev_b32", V(80), 16, V(src))
                g.valu("v_and_b32", V(81), 0xFFFF0000, V(src))
                g.valu("v_add_f32", V(64 + 2 * r), V(64 + 2 * r), V(80))
                g.valu("v_add_f32", V(64 + 2 * r + 1), V(64 + 2 * r + 1), V(81))
    for r in range(8):
        g.valu("v_cvt_pk_bf16_f32", V(84 + r), V(64 + 2 * r), V(64 + 2 * r + 1))
    g.bstore(84, 4, voo, SOut, 0, 0)
    g.bstore(88, 4, voo, SOut, 0, 32)
    g.text(f"{end}:")
    g.text("  s_endpgm")


HEAD = """; Kernarg layout for this problem (64 bytes, ptrs only, base s[0:1]):
; @launch kernel=attn_kernel grid=(256,1,1) block=(512,1,1) lds=163840
; @launch kernel=oproj_kernel grid=(256,1,1) block=(512,1,1) lds=163840
; @launch kernel=reduce_kernel grid=(160,1,1) block=(256,1,1) lds=0
.amdgcn_target "amdgcn-amd-amdhsa--gfx950"
.text
"""


def main(out):
    parts = [HEAD]
    g = Gen()
    fused(g)
    parts.append(g.out())
    g2 = Gen()
    g2.nlabel = 100000
    k2(g2)
    parts.append(g2.out())
    g3 = Gen()
    g3.nlabel = 200000
    k3(g3)
    parts.append(g3.out())
    parts.append('.section .rodata,"a"\n.p2align 6\n')
    parts.append(kd("attn_kernel", 256, 100))
    parts.append(".p2align 6\n" + kd("oproj_kernel", 256, 100))
    parts.append(".p2align 6\n" + kd("reduce_kernel", 112))
    open(out, "w").write("".join(parts))


if __name__ == "__main__":
    if len(sys.argv) > 2 and sys.argv[2] == "stamps":
        STAMPS = True
        QST = len(sys.argv) > 3
    main(sys.argv[1] if len(sys.argv) > 1 else "standalone__gqa_block_cached__near_ridge.s")
```

```python
import sys
from gen import Gen, vr, sr, rng
from build import V, S, f32hex, srd, srd_off, header, kd, SCALE_LOG2E, O_BYTES, PART_OFF, PART_PER_QG
PART_BYTES = 8 * 128 * 10240

SLOT = 16384
STAMPS = False
QST = False
NST = [0]
ST0 = 70


def stamp(g):
    if not STAMPS:
        return
    i = NST[0]
    NST[0] += 1
    assert ST0 + i < 92
    g.wait(lgkm=0)
    g.text("  s_memtime s[48:49]")
    g.text("  s_waitcnt lgkmcnt(0)")
    g.text(f"  s_mov_b32 s{ST0 + i}, s48")


def stamp_flush(g, wave_sreg):
    if not STAMPS:
        return
    n = NST[0]
    NST[0] = 0
    g.text("  s_mov_b64 exec, -1")
    g.text("  s_add_u32 s92, s44, 0x4000000")
    g.text("  s_addc_u32 s93, s45, 0")
    g.text("  s_and_b32 s93, s93, 0xffff")
    g.text("  s_mov_b32 s94, 0x1000000")
    g.text("  s_mov_b32 s95, 0x20000")
    g.text("  s_lshl_b32 s48, s2, 3")
    g.text(f"  s_add_u32 s48, s48, s{wave_sreg}")
    g.text("  s_lshl_b32 s48, s48, 7")
    g.text("  v_mov_b32 v200, s48")
    for i in range(n):
        g.text(f"  v_mov_b32 v201, s{ST0 + i}")
        g.text(f"  buffer_store_dword v201, v200, s[92:95], 0 offen offset:{4 * i}")
        g.text("  s_nop 1")


SX, SW, SK, SV, SO, SWO, SP, SD = 4, 8, 12, 16, 20, 56, 60, 64
s_wave, s_role, s_qg, s_b, s_h, s_t0, s_t1, s_wl, s_c, s_r, s_ks, s_nq = 24, 25, 26, 27, 28, 29, 30, 31, 32, 33, 34, 35
vS, vO, vQf, vF = 0, 128, 160, 192
v_lane, v_xB, v_wA, v_dma, v_dmaV, v_kA, v_vA = 224, 225, 227, 230, 234, 235, 243
v_m, v_l, v_mc, v_t, v_t2, v_t3, v_l2, v_oo, v_ex, v_g = 247, 248, 249, 250, 251, 252, 253, 254, 255, 253
v_tch = 254
QBASE = 0
QXB = 6 * SLOT
lane = V(v_lane)


def fused(g, name="attn_kernel"):
    header(g, name)
    end = ".LEND_F"
    g.text("  s_load_dwordx4 s[36:39], s[0:1], 0")
    g.text("  s_load_dwordx4 s[40:43], s[0:1], 16")
    g.text("  s_load_dwordx2 s[46:47], s[0:1], 32")
    g.text("  s_load_dwordx4 s[52:55], s[0:1], 48")
    g.scmp("s_cmp_ge_u32", S(2), 256)
    g.misc(f"s_cbranch_scc1 {end}")
    g.valu("v_and_b32", lane, 63, V(0))
    g.valu("v_lshrrev_b32", V(v_t), 6, V(0))
    g.valu("v_readfirstlane_b32", S(s_wave), V(v_t), rdlane=True)
    g.salu("s_lshr_b32", S(s_role), S(s_wave), 2)
    g.salu("s_and_b32", S(s_qg), S(s_wave), 3)
    g.salu("s_lshr_b32", S(s_b), S(2), 5)
    g.salu("s_and_b32", S(s_h), S(2), 31)
    g.salu("s_and_b32", S(s_ks), S(2), 7)
    g.salu("s_lshr_b32", S(s_nq), S(s_h), 3)
    g.salu("s_mov_b32", S(s_c), f32hex(SCALE_LOG2E))
    g.salu("s_lshl_b32", S(s_wl), S(s_qg), 12)
    g.text("  s_waitcnt lgkmcnt(0)")
    g.salu("s_mov_b32", S(44), S(54))
    g.salu("s_mov_b32", S(45), S(55))
    srd(g, SX, 36, 37, 8 * 112 * 640 * 2)
    srd(g, SW, 42, 43, 640 * 4096 * 2)
    g.salu("s_lshl_b32", S(s_t0), S(2), 17)
    srd_off(g, SK, 38, 39, s_t0, 131072)
    srd_off(g, SV, 40, 41, s_t0, 131072)
    srd(g, SO, 54, 55, 8 * 1024 * 1024)
    srd(g, SWO, 46, 47, 4096 * 640 * 2)
    g.salu("s_mov_b32", S(s_t0), PART_OFF)
    srd_off(g, SP, 54, 55, s_t0, PART_BYTES)
    srd(g, SD, 52, 53, 256)
    g.scmp("s_cmp_lg_u32", S(s_role), 0)
    g.misc("s_cbranch_scc1 .LROLE1")
    hist = list(g.hist)
    prog(g, 0)
    g.text(".LROLE1:")
    g.hist = hist
    g.dsq = []
    prog(g, 1)
    g.text(f"{end}:")
    g.text("  s_endpgm")


def prog(g, role):
    NST[0] = 0
    if role == 0:
        g.salu("s_mul_i32", S(s_t0), S(s_b), 112)
        g.salu("s_lshl_b32", S(s_t1), S(s_qg), 5)
        g.salu("s_add_u32", S(s_t0), S(s_t0), S(s_t1))
        g.valu("v_lshrrev_b32", V(v_t), 2, lane)
        g.valu("v_add_u32", V(v_t), S(s_t0), V(v_t))
        g.valu("v_mul_u32_u24", V(v_t), 1280, V(v_t))
        g.valu("v_lshrrev_b32", V(v_t2), 4, lane)
        g.valu("v_xor_b32", V(v_t2), V(v_t2), lane)
        g.valu("v_and_b32", V(v_t2), 3, V(v_t2))
        g.valu("v_lshl_add_u32", V(v_dma + 0), V(v_t2), 4, V(v_t))
        g.valu("v_add_u32", V(v_dma + 1), 16 * 1280 - 1024, V(v_dma + 0))
        g.valu("v_lshrrev_b32", V(v_t), 4, lane)
        g.valu("v_lshlrev_b32", V(v_t2), 2, V(v_t))
        g.valu("v_xor_b32", V(v_t2), V(v_t2), lane)
        g.valu("v_and_b32", V(v_t2), 15, V(v_t2))
        g.salu("s_lshl_b32", S(s_t0), S(s_qg), 3)
        g.valu("v_add_u32", V(v_t), S(s_t0), V(v_t))
        g.valu("v_lshlrev_b32", V(v_t), 13, V(v_t))
        g.valu("v_lshl_add_u32", V(v_t), V(v_t2), 4, V(v_t))
        g.salu("s_lshl_b32", S(s_t0), S(s_h), 8)
        g.valu("v_add_u32", V(v_dma + 2), S(s_t0), V(v_t))
        g.valu("v_add_u32", V(v_dma + 3), 4 * 8192 - 1024, V(v_dma + 2))
    else:
        g.valu("v_lshrrev_b32", V(v_t), 4, lane)
        for i in range(4):
            g.valu("v_add_u32", V(v_t2), 4 * i, V(v_t))
            g.valu("v_xor_b32", V(v_t2), V(v_t2), lane)
            g.valu("v_and_b32", V(v_t2), 15, V(v_t2))
            g.valu("v_lshlrev_b32", V(v_t2), 4, V(v_t2))
            g.valu("v_lshl_add_u32", V(v_dma + i), V(v_t), 8, V(v_t2))
        g.valu("v_lshlrev_b32", V(v_t2), 2, V(v_t))
        g.valu("v_xor_b32", V(v_t2), V(v_t2), lane)
        g.valu("v_and_b32", V(v_t2), 15, V(v_t2))
        g.valu("v_lshlrev_b32", V(v_t2), 4, V(v_t2))
        g.valu("v_lshl_add_u32", V(v_dmaV), V(v_t), 8, V(v_t2))

    def issue_chunk(c):
        assert role == 0
        buf = QBASE + (c % 10) * SLOT
        g.salu("s_lshl_b32", S(s_t0), S(s_qg), 11)
        g.salu("s_add_u32", "m0", S(s_t0), buf)
        g.salu("s_mov_b32", S(s_t1), c * 64)
        g.dma(v_dma + 0, SX, S(s_t1))
        g.dma(v_dma + 1, SX, S(s_t1), 1024)
        g.salu("s_add_u32", "m0", S(s_t0), buf + 8192)
        g.salu("s_mov_b32", S(s_t1), c * 262144)
        g.dma(v_dma + 2, SW, S(s_t1))
        g.dma(v_dma + 3, SW, S(s_t1), 1024)

    ITEM_SLOT = {0: 0, 1: 1, 2: 2, 3: 3, 4: 4, 5: 5, 6: 8, 7: 9, 8: 6, 9: 7, 10: 0, 11: 1, 12: 2, 13: 3, 14: 4, 15: 5}
    issued = []

    def touch_pair(p):
        if role != 1:
            return
        g.salu("s_lshl_b32", S(s_t1), S(s_qg), 13)
        g.salu("s_add_u32", S(s_t1), S(s_t1), (p & 3) * 32768)
        g.bload(v_t3, 1, v_tch, SK if p < 4 else SV, S(s_t1), 0, " nt")
        issued.append((("t", p), 1))

    def issue_item(it):
        if role != 1:
            return
        base = ITEM_SLOT[it] * SLOT
        g.salu("s_add_u32", "m0", S(s_wl), base)
        g.salu("s_add_u32", S(s_t1), S(s_wl), (it & 7) * SLOT)
        for i in range(4):
            if it < 8:
                g.dma(v_dma + i, SK, S(s_t1), 1024 * i, " nt")
            else:
                g.dma(v_dmaV, SV, S(s_t1), 1024 * i, " nt")
        issued.append((it, 4))

    def wait_item(it):
        if role != 1:
            return
        idx = [i for i, (t, _) in enumerate(issued) if t == it][0]
        g.wait(vm=min(63, sum(n for _, n in issued[idx + 1:])))

    stamp(g)
    if role == 0:
        for c in range(10):
            issue_chunk(c)
    else:
        g.salu("s_lshl_b32", S(s_r), S(s_b), 2)
        g.salu("s_add_u32", S(s_r), S(s_r), S(s_nq))
        g.salu("s_mul_i32", S(s_t0), S(s_r), 280)
        g.salu("s_mul_i32", S(s_t1), S(s_qg), 70)
        g.salu("s_add_u32", S(s_t0), S(s_t0), S(s_t1))
        g.valu("v_add_u32", V(v_t), S(s_t0), lane)
        g.valu("v_lshlrev_b32", V(v_t), 7, V(v_t))
        g.bload(v_t3, 1, v_t, SX, 0, 0)
        g.valu("v_add_u32", V(v_t), 6 * 128, V(v_t))
        g.bload(v_t3, 1, v_t, SX, 0, 0)
        g.salu("s_lshr_b32", S(s_t0), S(s_r), 2)
        g.salu("s_mul_i32", S(s_t0), S(s_t0), 80)
        g.salu("s_mul_i32", S(s_t1), S(s_qg), 20)
        g.salu("s_add_u32", S(s_t0), S(s_t0), S(s_t1))
        g.valu("v_lshrrev_b32", V(v_t), 1, lane)
        g.valu("v_min_u32", V(v_t), 19, V(v_t))
        g.valu("v_add_u32", V(v_t), S(s_t0), V(v_t))
        g.valu("v_lshlrev_b32", V(v_t), 13, V(v_t))
        g.valu("v_and_b32", V(v_t2), 1, lane)
        g.valu("v_lshl_add_u32", V(v_t), V(v_t2), 7, V(v_t))
        g.salu("s_and_b32", S(s_t0), S(s_r), 3)
        g.salu("s_lshl_b32", S(s_t0), S(s_t0), 3)
        g.salu("s_add_u32", S(s_t0), S(s_t0), S(s_ks))
        g.salu("s_lshl_b32", S(s_t0), S(s_t0), 8)
        g.bload(v_t3, 1, v_t, SW, S(s_t0), 0)
        g.valu("v_lshlrev_b32", V(v_tch), 7, lane)

    g.valu("v_and_b32", V(v_t), 31, lane)
    g.valu("v_lshrrev_b32", V(v_t2), 5, lane)
    g.salu("s_lshl_b32", S(s_t0), S(s_qg), 5)
    g.valu("v_add_u32", V(v_g), S(s_t0), V(v_t))
    g.valu("v_lshrrev_b32", V(v_ex), 2, V(v_g))
    g.valu("v_and_b32", V(v_ex), 3, V(v_ex))
    g.valu("v_xor_b32", V(v_ex), V(v_ex), V(v_t2))
    g.valu("v_lshlrev_b32", V(v_g), 6, V(v_g))
    g.valu("v_lshl_add_u32", V(v_xB), V(v_ex), 4, V(v_g))
    g.valu("v_add_u32", V(v_xB), QBASE, V(v_xB))
    g.valu("v_xor_b32", V(v_xB + 1), 32, V(v_xB))
    vr_r, vr_col = v_m, v_l
    g.valu("v_lshrrev_b32", V(vr_r), 2, lane)
    g.valu("v_and_b32", V(vr_r), 3, V(vr_r))
    g.valu("v_and_b32", V(vr_col), 1, lane)
    g.valu("v_lshlrev_b32", V(vr_col), 4, V(vr_col))
    g.valu("v_and_b32", V(v_g), 2, lane)
    g.valu("v_lshl_add_u32", V(vr_col), V(v_g), 2, V(vr_col))
    g.valu("v_and_b32", V(v_g), 16, lane)
    g.valu("v_lshl_add_u32", V(vr_col), V(v_g), 1, V(vr_col))
    QT = [0] if role == 0 else [1, 2, 3]
    g.valu("v_lshl_add_u32", V(v_g), V(v_t2), 3, V(vr_r))
    g.valu("v_lshl_add_u32", V(v_g), V(v_g), 8, V(vr_col))
    g.valu("v_add_u32", V(v_g), QBASE + 8192, V(v_g))
    for i, T in enumerate(QT):
        g.valu("v_xor_b32", V(v_ex), T, V(vr_r))
        g.valu("v_lshl_add_u32", V(v_wA + i), V(v_ex), 6, V(v_g))
    g.valu("v_lshl_add_u32", V(v_g), V(v_t2), 2, V(vr_r))
    if role:
        g.valu("v_add_u32", V(v_g), 32, V(v_g))
    g.valu("v_lshl_add_u32", V(v_g), V(v_g), 8, V(vr_col))
    for t in range(4):
        g.valu("v_xor_b32", V(v_ex), t, V(vr_r))
        g.valu("v_lshl_add_u32", V(v_vA + t), V(v_ex), 6, V(v_g))
    g.valu("v_add_u32", V(v_g), 32 * role, V(v_t))
    g.valu("v_and_b32", V(v_ex), 15, V(v_g))
    g.valu("v_xor_b32", V(v_ex), V(v_ex), V(v_t2))
    g.valu("v_lshlrev_b32", V(v_g), 8, V(v_g))
    g.valu("v_lshl_add_u32", V(v_kA), V(v_ex), 4, V(v_g))
    for s in range(1, 8):
        g.valu("v_xor_b32", V(v_kA + s), s << 5, V(v_kA))

    cur_kbase = [0]
    cur_vbase = [0]

    def k_rebase(it):
        base = (ITEM_SLOT[it] * SLOT // 65536) * 65536
        if base != cur_kbase[0]:
            d = base - cur_kbase[0]
            for s in range(8):
                g.valu("v_add_u32", V(v_kA + s), d & 0xFFFFFFFF, V(v_kA + s))
            cur_kbase[0] = base

    def k_read(it, s, dst):
        off = ITEM_SLOT[it] * SLOT - cur_kbase[0]
        g.ds_read("ds_read_b128", dst + 4 * s, 4, v_kA + s, off)

    def v_rebase(it):
        base = (ITEM_SLOT[it] * SLOT // 65536) * 65536
        if base != cur_vbase[0]:
            d = base - cur_vbase[0]
            for t in range(4):
                g.valu("v_add_u32", V(v_vA + t), d & 0xFFFFFFFF, V(v_vA + t))
            cur_vbase[0] = base

    def v_read(it, u, t):
        off = ITEM_SLOT[it] * SLOT - cur_vbase[0]
        f = vF + 4 * (4 * u + t)
        for e in range(2):
            g.ds_read("ds_read_b64_tr_b16", f + 2 * e, 2, v_vA + t, off + (16 * u + 8 * e) * 256)

    nT = len(QT)
    vQacc = 128
    setsz = 8 + 8 * nT

    def qfr(setn):
        b = setn * setsz
        return dict(B=[b, b + 4], A=[[b + 8 + 4 * (nT * s + i) for i in range(nT)] for s in range(2)])

    qb = [0]

    def q_reads(c):
        f = qfr(c & 1)
        base = ((c % 10) // 4) * 65536
        if base != qb[0]:
            d = (base - qb[0]) & 0xFFFFFFFF
            for rg in [v_xB, v_xB + 1] + [v_wA + i for i in range(nT)]:
                g.valu("v_add_u32", V(rg), d, V(rg))
            qb[0] = base
        off = (c % 10) * SLOT - base
        for s in range(2):
            g.ds_read("ds_read_b128", f["B"][s], 4, v_xB + s, off)
            for i in range(nT):
                for e in range(2):
                    g.ds_read("ds_read_b64_tr_b16", f["A"][s][i] + 2 * e, 2, v_wA + i, off + (16 * s + 4 * e) * 256)

    KREG = {}
    K_ISSUE = {10: [0], 11: [1], 12: [2]}
    K_DRAIN = {}
    T_ISSUE = {}

    stamp(g)
    if role == 0:
        g.wait(vm=36)
    g.barrier()
    stamp(g)
    q_reads(0)
    NCH = 20
    for c in range(NCH):
        g.wait(lgkm=0)
        if c + 1 < NCH:
            if role == 0:
                g.wait(vm=4 * (min(c + 9, NCH - 1) - (c + 1)))
            if c in K_DRAIN:
                wait_item(K_DRAIN[c])
            g.barrier()
            if QST and c in (1, 3, 5, 7, 9, 11, 13, 15, 17):
                stamp(g)
            q_reads(c + 1)
        f = qfr(c & 1)
        for s in range(2):
            for i in range(nT):
                first = (c == 0 and s == 0)
                g.mfma32(vQacc + 16 * i, f["A"][s][i], f["B"][s], "0" if first else vQacc + 16 * i)
        if c in K_DRAIN:
            it = K_DRAIN[c]
            for s in range(8):
                k_read(it, s, KREG[it])
        if role == 0 and c + 10 < NCH:
            issue_chunk(c + 10)
        for p_ in T_ISSUE.get(c, []):
            touch_pair(p_)
        for it in K_ISSUE.get(c, []):
            issue_item(it)

    g.salu("s_lshl_b32", S(s_t0), S(s_qg), 13)
    g.salu("s_add_u32", S(s_t0), S(s_t0), QXB)
    g.valu("v_lshlrev_b32", V(v_ex), 4, lane)
    g.valu("v_add_u32", V(v_ex), S(s_t0), V(v_ex))
    tmpq = 0
    for i, T in enumerate(QT):
        for u in range(2):
            for j in range(4):
                g.valu("v_cvt_pk_bf16_f32", V(tmpq + 8 * i + 4 * u + j), V(vQacc + 16 * i + 8 * u + 2 * j),
                       V(vQacc + 16 * i + 8 * u + 2 * j + 1))
    for i, T in enumerate(QT):
        for u in range(2):
            g.ds_write("ds_write_b128", v_ex, tmpq + 8 * i + 4 * u, 4, (2 * T + u) * 1024)
    g.wait(lgkm=0)
    stamp(g)
    g.barrier()
    issue_item(3)
    issue_item(4)
    for i in range(8):
        g.ds_read("ds_read_b128", vQf + 4 * i, 4, v_ex, i * 1024)
    g.wait(lgkm=0)
    g.barrier()
    stamp(g)
    wait_item(0)
    g.barrier()
    for s in range(8):
        k_read(0, s, vF)

    def maxtile(j, first):
        b = vS + 16 * j
        ops = []
        if first:
            ops.append(lambda: g.valu("v_max3_f32", V(v_m), V(b), V(b + 1), V(b + 2)))
            ops.append(lambda: g.valu("v_max3_f32", V(v_l), V(b + 3), V(b + 4), V(b + 5)))
            k = 6
        else:
            k = 0
        while k + 1 < 16:
            tgt = v_m if (k // 2) % 2 == 0 else v_l
            ops.append(lambda k=k, tgt=tgt: g.valu("v_max3_f32", V(tgt), V(tgt), V(b + k), V(b + k + 1)))
            k += 2
        return ops

    for j in range(8):
        pre = j + 1
        g.wait(lgkm=0)
        wait_item(pre)
        g.barrier()
        if pre < 8:
            k_rebase(pre)
        else:
            v_rebase(8)
        src = KREG[j] if j in KREG else vF
        mx = maxtile(j - 1, j == 1) if j >= 1 else []
        for s in range(8):
            g.mfma32(vS + 16 * j, src + 4 * s, vQf + 4 * s, "0" if s == 0 else vS + 16 * j)
            if pre is not None:
                if pre < 8:
                    k_read(pre, s, vF)
                else:
                    v_read(8, s // 4, s % 4)
            if mx:
                mx.pop(0)()
        while mx:
            mx.pop(0)()
        issue_item(j + 5)
    stamp(g)
    for op in maxtile(7, False):
        op()
    g.valu("v_max_f32", V(v_m), V(v_m), V(v_l))
    g.valu("v_mov_b32", V(v_t), V(v_m))
    g.valu("v_permlane32_swap_b32", V(v_m), V(v_t), permlane=True)
    g.valu("v_max_f32", V(v_m), V(v_m), V(v_t))
    g.valu("v_mul_f32", V(v_mc), S(s_c), V(v_m))
    g.valu("v_sub_f32", V(v_mc), 0, V(v_mc))

    def exp_ops(j, first):
        b = vS + 16 * j
        ops = []
        for r2 in range(8):
            a0, a1 = b + 2 * r2, b + 2 * r2 + 1
            ops.append(lambda a0=a0: g.valu("v_fma_f32", V(a0), V(a0), S(s_c), V(v_mc)))
            ops.append(lambda a1=a1: g.valu("v_fma_f32", V(a1), V(a1), S(s_c), V(v_mc)))
            ops.append(lambda a0=a0: g.valu("v_exp_f32", V(a0), V(a0), trans=True))
            ops.append(lambda a1=a1: g.valu("v_exp_f32", V(a1), V(a1), trans=True))
            if first and r2 == 0:
                ops.append(lambda a0=a0: g.valu("v_mov_b32", V(v_l), V(a0)))
                ops.append(lambda a1=a1: g.valu("v_mov_b32", V(v_l2), V(a1)))
            else:
                ops.append(lambda a0=a0: g.valu("v_add_f32", V(v_l), V(v_l), V(a0)))
                ops.append(lambda a1=a1: g.valu("v_add_f32", V(v_l2), V(v_l2), V(a1)))
            ops.append(lambda a0=a0, a1=a1, d=b + r2: g.valu("v_cvt_pk_bf16_f32", V(d), V(a0), V(a1)))
        return ops

    for op in exp_ops(0, True):
        op()

    stamp(g)
    for j in range(8):
        it = 8 + j
        nxt = it + 1
        g.wait(lgkm=0)
        if nxt < 16:
            wait_item(nxt)
        g.barrier()
        if nxt < 16:
            v_rebase(nxt)
        if j == 5 and role == 1:
            g.salu("s_lshr_b32", S(s_t0), S(s_r), 3)
            g.salu("s_lshl_b32", S(s_t0), S(s_t0), 3)
            g.salu("s_add_u32", S(s_t0), S(s_t0), S(s_ks))
            g.salu("s_mul_i32", S(s_t0), S(s_t0), 163840)
            g.salu("s_and_b32", S(s_t1), S(s_r), 7)
            g.salu("s_mul_i32", S(s_t1), S(s_t1), 160)
            g.valu("v_min_u32", V(v_t), 39, lane)
            g.valu("v_add_u32", V(v_t), S(s_t1), V(v_t))
            g.salu("s_mul_i32", S(s_t1), S(s_qg), 40)
            g.valu("v_add_u32", V(v_t), S(s_t1), V(v_t))
            g.valu("v_lshlrev_b32", V(v_t), 7, V(v_t))
            g.bload(v_xB, 1, v_t, SWO, S(s_t0), 0)
            issued.append((("wo", 0), 1))
        ex = exp_ops(j + 1, False) if j + 1 < 8 else []
        if j == 6:
            def fin_l():
                g.valu("v_add_f32", V(v_l), V(v_l), V(v_l2))
                g.valu("v_mov_b32", V(v_t), V(v_l))
                g.valu("v_permlane32_swap_b32", V(v_l), V(v_t), permlane=True)
                g.valu("v_add_f32", V(v_l), V(v_l), V(v_t))
            ex.append(fin_l)
        per = (len(ex) + 7) // 8
        for i in range(8):
            u, t = i // 4, i % 4
            g.mfma32(vO + 16 * t, vF + 4 * i, vS + 16 * j + 4 * u, "0" if (j == 0 and u == 0) else vO + 16 * t)
            if nxt < 16:
                v_read(nxt, u, t)
            for _ in range(per):
                if ex:
                    ex.pop(0)()
        while ex:
            ex.pop(0)()
        if it + 5 < 16:
            issue_item(it + 5)

    stamp(g)
    XW = 8704
    g.salu("s_mul_i32", S(s_t0), S(s_wave), XW)
    g.valu("v_lshlrev_b32", V(v_ex), 4, lane)
    g.valu("v_add_u32", V(v_ex), S(s_t0), V(v_ex))
    g.valu("v_lshlrev_b32", V(v_t3), 2, lane)
    g.valu("v_add_u32", V(v_t3), S(s_t0), V(v_t3))
    g.ds_write("ds_write_b32", v_t3, v_m, 1, 8192)
    g.ds_write("ds_write_b32", v_t3, v_l, 1, 8192 + 256)
    sb = vO + 32 * (1 - role)
    for qd in range(8):
        g.ds_write("ds_write_b128", v_ex, sb + 4 * qd, 4, qd * 1024)
    g.wait(lgkm=0)
    g.barrier()
    d = (4 * XW) if role == 0 else (-4 * XW) & 0xFFFFFFFF
    g.valu("v_add_u32", V(v_ex), d, V(v_ex))
    g.valu("v_add_u32", V(v_t3), d, V(v_t3))
    g.ds_read("ds_read_b32", v_t, 1, v_t3, 8192)
    g.ds_read("ds_read_b32", v_t2, 1, v_t3, 8192 + 256)
    for qd in range(8):
        g.ds_read("ds_read_b128", vS + 4 * qd, 4, v_ex, qd * 1024)
    g.valu("v_max_f32", V(v_g), V(v_m), V(v_t))
    g.valu("v_sub_f32", V(v_m), V(v_m), V(v_g))
    g.valu("v_sub_f32", V(v_t), V(v_t), V(v_g))
    g.valu("v_mul_f32", V(v_m), S(s_c), V(v_m))
    g.valu("v_mul_f32", V(v_t), S(s_c), V(v_t))
    g.valu("v_exp_f32", V(v_m), V(v_m), trans=True)
    g.valu("v_exp_f32", V(v_t), V(v_t), trans=True)
    g.valu("v_mul_f32", V(v_l), V(v_l), V(v_m))
    g.valu("v_fma_f32", V(v_l), V(v_t2), V(v_t), V(v_l))
    g.valu("v_rcp_f32", V(v_l), V(v_l), trans=True)
    g.valu("v_mul_f32", V(v_m), V(v_m), V(v_l))
    g.valu("v_mul_f32", V(v_t), V(v_t), V(v_l))
    kb = vO + 32 * role
    for r in range(32):
        g.valu("v_mul_f32", V(vS + r), V(vS + r), V(v_t))
        g.valu("v_fma_f32", V(vS + r), V(kb + r), V(v_m), V(vS + r))
    for r2 in range(16):
        g.valu("v_cvt_pk_bf16_f32", V(vS + 32 + r2), V(vS + 2 * r2), V(vS + 2 * r2 + 1))
    g.salu("s_lshl_b32", S(s_t0), S(2), 2)
    g.salu("s_add_u32", S(s_t0), S(s_t0), S(s_qg))
    g.salu("s_lshl_b32", S(s_t0), S(s_t0), 13)
    g.salu("s_add_u32", S(s_t0), S(s_t0), 4096 * role)
    g.valu("v_lshlrev_b32", V(v_oo), 4, lane)
    g.valu("v_add_u32", V(v_oo), S(s_t0), V(v_oo))
    for i in range(4):
        g.bstore(vS + 32 + 4 * i, 4, v_oo, SO, 0, 1024 * i, " nt")
    if STAMPS:
        g.wait(vm=0)
    stamp(g)
    stamp_flush(g, s_wave)
    g.text("  s_endpgm")


def k2(g, name="oproj_kernel"):
    header(g, name)
    end = ".LEND_K2"
    g.text("  s_load_dwordx2 s[46:47], s[0:1], 32")
    g.text("  s_load_dwordx2 s[54:55], s[0:1], 56")
    g.scmp("s_cmp_ge_u32", S(2), 256)
    g.misc(f"s_cbranch_scc1 {end}")
    g.valu("v_and_b32", lane, 63, V(0))
    g.valu("v_lshrrev_b32", V(v_t), 6, V(0))
    g.valu("v_readfirstlane_b32", S(s_wave), V(v_t), rdlane=True)
    g.salu("s_lshr_b32", S(s_role), S(s_wave), 2)
    g.salu("s_and_b32", S(s_qg), S(s_wave), 3)
    g.salu("s_lshr_b32", S(s_b), S(2), 5)
    g.salu("s_and_b32", S(s_h), S(2), 31)
    g.salu("s_and_b32", S(s_ks), S(2), 7)
    g.salu("s_lshr_b32", S(s_nq), S(s_h), 3)
    g.text("  s_waitcnt lgkmcnt(0)")
    g.salu("s_mov_b32", S(44), S(54))
    g.salu("s_mov_b32", S(45), S(55))
    srd(g, SO, 54, 55, 8 * 1024 * 1024)
    srd(g, SWO, 46, 47, 4096 * 640 * 2)
    g.salu("s_mov_b32", S(s_t0), PART_OFF)
    srd_off(g, SP, 54, 55, s_t0, PART_BYTES)
    g.scmp("s_cmp_lg_u32", S(s_role), 0)
    g.misc("s_cbranch_scc1 .LK2ROLE1")
    hist = list(g.hist)
    k2prog(g, 0)
    g.text(".LK2ROLE1:")
    g.hist = hist
    g.dsq = []
    k2prog(g, 1)
    g.text(f"{end}:")
    g.text("  s_endpgm")


def k2prog(g, role):
    NST[0] = 0
    stamp(g)
    vB, vAcc, vA = 0, 64, 144
    g.valu("v_lshlrev_b32", V(v_g), 4, lane)
    for hh in range(2):
        g.salu("s_lshl_b32", S(s_t0), S(s_b), 5)
        g.salu("s_add_u32", S(s_t0), S(s_t0), S(s_ks))
        g.salu("s_add_u32", S(s_t0), S(s_t0), 8 * (2 * role + hh))
        g.salu("s_lshl_b32", S(s_t0), S(s_t0), 2)
        g.salu("s_add_u32", S(s_t0), S(s_t0), S(s_qg))
        g.salu("s_lshl_b32", S(s_t0), S(s_t0), 13)
        for s in range(8):
            if s == 4:
                g.salu("s_add_u32", S(s_t0), S(s_t0), 4096)
            g.bload(vB + 4 * (8 * hh + s), 4, v_g, SO, S(s_t0), 1024 * (s & 3))
    v_wd = 204
    for i in range(5):
        g.valu("v_lshlrev_b32", V(v_t), 4, lane)
        g.valu("v_add_u32", V(v_t), 1024 * i, V(v_t))
        g.valu("v_mul_u32_u24", V(v_t2), 3277, V(v_t))
        g.valu("v_lshrrev_b32", V(v_t2), 20, V(v_t2))
        g.valu("v_mul_u32_u24", V(v_t3), 320, V(v_t2))
        g.valu("v_sub_u32", V(v_t3), V(v_t), V(v_t3))
        g.valu("v_mul_u32_u24", V(v_t2), 1280, V(v_t2))
        g.valu("v_add_u32", V(v_t2), V(v_t2), V(v_t3))
        g.salu("s_mul_i32", S(s_t0), S(s_nq), 320)
        g.salu("s_add_u32", S(s_t0), S(s_t0), (-1024 * (i & 3)) & 0xFFFFFFFF)
        g.valu("v_add_u32", V(v_wd + i), S(s_t0), V(v_t2))

    def wo_dma(st):
        g.salu("s_lshl_b32", S(s_t0), S(s_role), 1)
        g.salu("s_add_u32", S(s_t0), S(s_t0), st)
        g.salu("s_lshl_b32", S(s_t1), S(s_t0), 7)
        g.salu("s_lshl_b32", S(s_r), S(s_qg), 5)
        g.salu("s_add_u32", S(s_t1), S(s_t1), S(s_r))
        g.salu("s_mul_i32", S(s_t1), S(s_t1), 320)
        g.salu("s_lshl_b32", S(s_t0), S(s_t0), 3)
        g.salu("s_add_u32", S(s_t0), S(s_t0), S(s_ks))
        g.salu("s_lshl_b32", S(s_t0), S(s_t0), 7)
        g.salu("s_add_u32", S(s_t0), S(s_t0), S(s_r))
        g.salu("s_mul_i32", S(s_t0), S(s_t0), 1280)
        for gi in range(2):
            g.salu("s_add_u32", "m0", S(s_t1), gi * 5120)
            for i in range(4):
                g.dma(v_wd + i, SWO, S(s_t0), 1024 * i)
            g.salu("s_add_u32", "m0", S(s_t1), gi * 5120 + 4096)
            g.dma(v_wd + 4, SWO, S(s_t0), 0)
            if gi == 0:
                g.salu("s_add_u32", S(s_t0), S(s_t0), 16 * 1280)

    wo_dma(0)
    wo_dma(1)
    v_wA2 = v_wA
    g.valu("v_lshrrev_b32", V(v_t2), 5, lane)
    g.valu("v_lshrrev_b32", V(v_t), 2, lane)
    g.valu("v_and_b32", V(v_t), 3, V(v_t))
    g.valu("v_lshl_add_u32", V(v_t), V(v_t2), 3, V(v_t))
    g.valu("v_add_u32", V(v_t), 256 * role, V(v_t))
    g.valu("v_mul_u32_u24", V(v_t), 320, V(v_t))
    g.valu("v_and_b32", V(v_t2), 1, lane)
    g.valu("v_lshl_add_u32", V(v_t), V(v_t2), 4, V(v_t))
    g.valu("v_and_b32", V(v_t2), 2, lane)
    g.valu("v_lshl_add_u32", V(v_t), V(v_t2), 2, V(v_t))
    g.valu("v_and_b32", V(v_t2), 16, lane)
    g.valu("v_lshl_add_u32", V(v_wA2), V(v_t2), 1, V(v_t))
    abase = [0]

    def a_reads(k):
        if k == 8:
            g.valu("v_add_u32", V(v_wA2), 8 * 5120, V(v_wA2))
            abase[0] = 8
        for t in range(5):
            for e in range(2):
                g.ds_read("ds_read_b64_tr_b16", vA + 20 * (k % 3) + 4 * t + 2 * e, 2, v_wA2,
                          (k - abase[0]) * 5120 + t * 64 + 4 * e * 320)

    g.wait(vm=10)
    g.barrier()
    stamp(g)
    a_reads(0)
    a_reads(1)
    for k in range(16):
        if k == 6:
            g.wait(vm=0)
            g.barrier()
        if k + 2 < 16:
            a_reads(k + 2)
        for t in range(5):
            g.mfma32(vAcc + 16 * t, vA + 20 * (k % 3) + 4 * t, vB + 4 * k, "0" if k == 0 else vAcc + 16 * t)
    stamp(g)
    g.wait(lgkm=0)
    g.barrier()
    g.salu("s_mul_i32", S(s_t0), S(s_wave), 10240)
    g.valu("v_lshlrev_b32", V(v_ex), 4, lane)
    g.valu("v_add_u32", V(v_ex), S(s_t0), V(v_ex))
    sendb = vAcc + 40 * (1 - role)
    keepb = vAcc + 40 * role
    for qd in range(10):
        g.ds_write("ds_write_b128", v_ex, sendb + 4 * qd, 4, qd * 1024)
    g.wait(lgkm=0)
    g.barrier()
    d = (4 * 10240) if role == 0 else (-4 * 10240) & 0xFFFFFFFF
    g.valu("v_add_u32", V(v_ex), d, V(v_ex))
    for qd in range(10):
        g.ds_read("ds_read_b128", vB + 4 * qd, 4, v_ex, qd * 1024)
    g.salu("s_lshl_b32", S(s_t0), S(s_ks), 3)
    g.salu("s_add_u32", S(s_t0), S(s_t0), S(s_b))
    g.salu("s_lshl_b32", S(s_t0), S(s_t0), 2)
    g.salu("s_add_u32", S(s_t0), S(s_t0), S(s_nq))
    g.salu("s_lshl_b32", S(s_t0), S(s_t0), 2)
    g.salu("s_add_u32", S(s_t0), S(s_t0), S(s_qg))
    g.salu("s_mul_i32", S(s_t0), S(s_t0), 10240)
    g.salu("s_add_u32", S(s_t0), S(s_t0), role * 5120)
    g.valu("v_lshlrev_b32", V(v_g), 4, lane)
    g.valu("v_add_u32", V(v_g), S(s_t0), V(v_g))
    for r in range(40):
        g.valu("v_add_f32", V(keepb + r), V(keepb + r), V(vB + r))
    for q5 in range(5):
        for j in range(4):
            g.valu("v_cvt_pk_bf16_f32", V(vB + 40 + 4 * q5 + j), V(keepb + 8 * q5 + 2 * j), V(keepb + 8 * q5 + 2 * j + 1))
        if q5 == 4:
            g.valu("v_add_u32", V(v_g), 4096, V(v_g))
        g.bstore(vB + 40 + 4 * q5, 4, v_g, SP, 0, (q5 % 4) * 1024, " nt")
    if STAMPS:
        g.wait(vm=0)
    stamp(g)
    stamp_flush(g, s_wave)
    g.text("  s_endpgm")


def k3(g, name="reduce_kernel"):
    header(g, name)
    end = ".LEND_K3"
    SPp, SOut = 4, 8
    g.text("  s_load_dwordx2 s[36:37], s[0:1], 40")
    g.text("  s_load_dwordx2 s[44:45], s[0:1], 56")
    g.scmp("s_cmp_ge_u32", S(2), 160)
    g.misc(f"s_cbranch_scc1 {end}")
    vl, vt, vt2, vpo, voo = 100, 101, 102, 103, 104
    ln = V(vl)
    sw, sgw, st, sx, sqg, snq, sb, st0, st1 = 24, 25, 26, 27, 28, 29, 30, 31, 32
    g.valu("v_and_b32", ln, 63, V(0))
    g.valu("v_lshrrev_b32", V(vt), 6, V(0))
    g.valu("v_readfirstlane_b32", S(sw), V(vt), rdlane=True)
    g.salu("s_lshl_b32", S(sgw), S(2), 2)
    g.salu("s_add_u32", S(sgw), S(sgw), S(sw))
    g.salu("s_mul_hi_u32", S(sx), S(sgw), 0x33333334)
    g.salu("s_mul_i32", S(st0), S(sx), 5)
    g.salu("s_sub_u32", S(st), S(sgw), S(st0))
    g.salu("s_and_b32", S(sqg), S(sx), 3)
    g.salu("s_lshr_b32", S(snq), S(sx), 2)
    g.salu("s_and_b32", S(snq), S(snq), 3)
    g.salu("s_lshr_b32", S(sb), S(sx), 4)
    g.text("  s_waitcnt lgkmcnt(0)")
    g.salu("s_mov_b32", S(st0), PART_OFF)
    srd_off(g, SPp, 44, 45, st0, PART_BYTES)
    srd(g, SOut, 36, 37, 896 * 640 * 2)
    g.salu("s_mul_i32", S(st0), S(sx), 10240)
    g.salu("s_lshl_b32", S(st1), S(st), 11)
    g.salu("s_add_u32", S(st0), S(st0), S(st1))
    g.valu("v_lshlrev_b32", V(vpo), 4, ln)
    g.valu("v_add_u32", V(vpo), S(st0), V(vpo))
    g.valu("v_and_b32", V(vt), 31, ln)
    g.salu("s_lshl_b32", S(st0), S(sqg), 5)
    g.valu("v_add_u32", V(vt), S(st0), V(vt))
    g.valu("v_cmp_gt_u32", "vcc", 112, V(vt), vcc_w=True)
    g.salu("s_mul_i32", S(st0), S(sb), 112)
    g.valu("v_add_u32", V(vt), S(st0), V(vt))
    g.valu("v_mul_u32_u24", V(vt), 1280, V(vt))
    g.valu("v_lshrrev_b32", V(vt2), 5, ln)
    g.valu("v_lshl_add_u32", V(vt), V(vt2), 4, V(vt))
    g.salu("s_mul_i32", S(st0), S(snq), 320)
    g.salu("s_lshl_b32", S(st1), S(st), 6)
    g.salu("s_add_u32", S(st0), S(st0), S(st1))
    g.valu("v_add_u32", V(voo), S(st0), V(vt))
    g.misc("s_and_saveexec_b64 s[46:47], vcc")
    g.misc(f"s_cbranch_execz {end}")
    for ks in range(8):
        g.salu("s_mov_b32", S(52 + ks), ks * 128 * 10240)
    for ks in range(8):
        for u in range(2):
            g.bload(8 * ks + 4 * u, 4, vpo, SPp, S(52 + ks), u * 1024)
    for ks in range(8):
        g.wait(vm=2 * (7 - ks))
        for r in range(8):
            src = 8 * ks + r
            if ks == 0:
                g.valu("v_lshlrev_b32", V(64 + 2 * r), 16, V(src))
                g.valu("v_and_b32", V(64 + 2 * r + 1), 0xFFFF0000, V(src))
            else:
                g.valu("v_lshlrev_b32", V(80), 16, V(src))
                g.valu("v_and_b32", V(81), 0xFFFF0000, V(src))
                g.valu("v_add_f32", V(64 + 2 * r), V(64 + 2 * r), V(80))
                g.valu("v_add_f32", V(64 + 2 * r + 1), V(64 + 2 * r + 1), V(81))
    for r in range(8):
        g.valu("v_cvt_pk_bf16_f32", V(84 + r), V(64 + 2 * r), V(64 + 2 * r + 1))
    g.bstore(84, 4, voo, SOut, 0, 0)
    g.bstore(88, 4, voo, SOut, 0, 32)
    g.text(f"{end}:")
    g.text("  s_endpgm")


HEAD = """; Kernarg layout for this problem (64 bytes, ptrs only, base s[0:1]):
; @launch kernel=attn_kernel grid=(256,1,1) block=(512,1,1) lds=163840
; @launch kernel=oproj_kernel grid=(256,1,1) block=(512,1,1) lds=163840
; @launch kernel=reduce_kernel grid=(160,1,1) block=(256,1,1) lds=0
.amdgcn_target "amdgcn-amd-amdhsa--gfx950"
.text
"""


def main(out):
    parts = [HEAD]
    g = Gen()
    fused(g)
    parts.append(g.out())
    g2 = Gen()
    g2.nlabel = 100000
    k2(g2)
    parts.append(g2.out())
    g3 = Gen()
    g3.nlabel = 200000
    k3(g3)
    parts.append(g3.out())
    parts.append('.section .rodata,"a"\n.p2align 6\n')
    parts.append(kd("attn_kernel", 256, 100))
    parts.append(".p2align 6\n" + kd("oproj_kernel", 256, 100))
    parts.append(".p2align 6\n" + kd("reduce_kernel", 112))
    open(out, "w").write("".join(parts))


if __name__ == "__main__":
    if len(sys.argv) > 2 and sys.argv[2] == "stamps":
        STAMPS = True
        QST = len(sys.argv) > 3
    main(sys.argv[1] if len(sys.argv) > 1 else "standalone__gqa_block_cached__near_ridge.s")
```

```python
import sys
from gen import Gen, vr, sr, rng
from build import V, S, f32hex, srd, srd_off, header, kd, SCALE_LOG2E, O_BYTES, PART_OFF, PART_PER_QG
PART_BYTES = 8 * 128 * 10240

SLOT = 16384
STAMPS = False
QST = False
NST = [0]
ST0 = 70


def stamp(g):
    if not STAMPS:
        return
    i = NST[0]
    NST[0] += 1
    assert ST0 + i < 92
    g.wait(lgkm=0)
    g.text("  s_memtime s[48:49]")
    g.text("  s_waitcnt lgkmcnt(0)")
    g.text(f"  s_mov_b32 s{ST0 + i}, s48")


def stamp_flush(g, wave_sreg):
    if not STAMPS:
        return
    n = NST[0]
    NST[0] = 0
    g.text("  s_mov_b64 exec, -1")
    g.text("  s_add_u32 s92, s44, 0x4000000")
    g.text("  s_addc_u32 s93, s45, 0")
    g.text("  s_and_b32 s93, s93, 0xffff")
    g.text("  s_mov_b32 s94, 0x1000000")
    g.text("  s_mov_b32 s95, 0x20000")
    g.text("  s_lshl_b32 s48, s2, 3")
    g.text(f"  s_add_u32 s48, s48, s{wave_sreg}")
    g.text("  s_lshl_b32 s48, s48, 7")
    g.text("  v_mov_b32 v200, s48")
    for i in range(n):
        g.text(f"  v_mov_b32 v201, s{ST0 + i}")
        g.text(f"  buffer_store_dword v201, v200, s[92:95], 0 offen offset:{4 * i}")
        g.text("  s_nop 1")


SX, SW, SK, SV, SO, SWO, SP, SD = 4, 8, 12, 16, 20, 56, 60, 64
s_wave, s_role, s_qg, s_b, s_h, s_t0, s_t1, s_wl, s_c, s_r, s_ks, s_nq = 24, 25, 26, 27, 28, 29, 30, 31, 32, 33, 34, 35
vS, vO, vQf, vF = 0, 128, 160, 192
v_lane, v_xB, v_wA, v_dma, v_dmaV, v_kA, v_vA = 224, 225, 227, 230, 234, 235, 243
v_m, v_l, v_mc, v_t, v_t2, v_t3, v_l2, v_oo, v_ex, v_g = 247, 248, 249, 250, 251, 252, 253, 254, 255, 253
v_tch = 254
QBASE = 3 * SLOT
QXB = 5 * SLOT
lane = V(v_lane)


def fused(g, name="attn_kernel"):
    header(g, name)
    end = ".LEND_F"
    g.text("  s_load_dwordx4 s[36:39], s[0:1], 0")
    g.text("  s_load_dwordx4 s[40:43], s[0:1], 16")
    g.text("  s_load_dwordx2 s[46:47], s[0:1], 32")
    g.text("  s_load_dwordx4 s[52:55], s[0:1], 48")
    g.scmp("s_cmp_ge_u32", S(2), 256)
    g.misc(f"s_cbranch_scc1 {end}")
    g.valu("v_and_b32", lane, 63, V(0))
    g.valu("v_lshrrev_b32", V(v_t), 6, V(0))
    g.valu("v_readfirstlane_b32", S(s_wave), V(v_t), rdlane=True)
    g.salu("s_lshr_b32", S(s_role), S(s_wave), 2)
    g.salu("s_and_b32", S(s_qg), S(s_wave), 3)
    g.salu("s_lshr_b32", S(s_b), S(2), 5)
    g.salu("s_and_b32", S(s_h), S(2), 31)
    g.salu("s_and_b32", S(s_ks), S(2), 7)
    g.salu("s_lshr_b32", S(s_nq), S(s_h), 3)
    g.salu("s_mov_b32", S(s_c), f32hex(SCALE_LOG2E))
    g.salu("s_lshl_b32", S(s_wl), S(s_qg), 12)
    g.text("  s_waitcnt lgkmcnt(0)")
    g.salu("s_mov_b32", S(44), S(54))
    g.salu("s_mov_b32", S(45), S(55))
    srd(g, SX, 36, 37, 8 * 112 * 640 * 2)
    srd(g, SW, 42, 43, 640 * 4096 * 2)
    g.salu("s_lshl_b32", S(s_t0), S(2), 17)
    srd_off(g, SK, 38, 39, s_t0, 131072)
    srd_off(g, SV, 40, 41, s_t0, 131072)
    srd(g, SO, 54, 55, 8 * 1024 * 1024)
    srd(g, SWO, 46, 47, 4096 * 640 * 2)
    g.salu("s_mov_b32", S(s_t0), PART_OFF)
    srd_off(g, SP, 54, 55, s_t0, PART_BYTES)
    srd(g, SD, 52, 53, 256)
    g.scmp("s_cmp_lg_u32", S(s_role), 0)
    g.misc("s_cbranch_scc1 .LROLE1")
    hist = list(g.hist)
    prog(g, 0)
    g.text(".LROLE1:")
    g.hist = hist
    g.dsq = []
    prog(g, 1)
    g.text(f"{end}:")
    g.text("  s_endpgm")


def prog(g, role):
    NST[0] = 0
    if role == 0:
        g.salu("s_mul_i32", S(s_t0), S(s_b), 112)
        g.salu("s_lshl_b32", S(s_t1), S(s_qg), 5)
        g.salu("s_add_u32", S(s_t0), S(s_t0), S(s_t1))
        g.valu("v_lshrrev_b32", V(v_t), 2, lane)
        g.valu("v_add_u32", V(v_t), S(s_t0), V(v_t))
        g.valu("v_mul_u32_u24", V(v_t), 1280, V(v_t))
        g.valu("v_lshrrev_b32", V(v_t2), 4, lane)
        g.valu("v_xor_b32", V(v_t2), V(v_t2), lane)
        g.valu("v_and_b32", V(v_t2), 3, V(v_t2))
        g.valu("v_lshl_add_u32", V(v_dma + 0), V(v_t2), 4, V(v_t))
        g.valu("v_add_u32", V(v_dma + 1), 16 * 1280 - 1024, V(v_dma + 0))
        g.valu("v_lshrrev_b32", V(v_t), 4, lane)
        g.valu("v_lshlrev_b32", V(v_t2), 2, V(v_t))
        g.valu("v_xor_b32", V(v_t2), V(v_t2), lane)
        g.valu("v_and_b32", V(v_t2), 15, V(v_t2))
        g.salu("s_lshl_b32", S(s_t0), S(s_qg), 3)
        g.valu("v_add_u32", V(v_t), S(s_t0), V(v_t))
        g.valu("v_lshlrev_b32", V(v_t), 13, V(v_t))
        g.valu("v_lshl_add_u32", V(v_t), V(v_t2), 4, V(v_t))
        g.salu("s_lshl_b32", S(s_t0), S(s_h), 8)
        g.valu("v_add_u32", V(v_dma + 2), S(s_t0), V(v_t))
        g.valu("v_add_u32", V(v_dma + 3), 4 * 8192 - 1024, V(v_dma + 2))
    else:
        g.valu("v_lshrrev_b32", V(v_t), 4, lane)
        for i in range(4):
            g.valu("v_add_u32", V(v_t2), 4 * i, V(v_t))
            g.valu("v_xor_b32", V(v_t2), V(v_t2), lane)
            g.valu("v_and_b32", V(v_t2), 15, V(v_t2))
            g.valu("v_lshlrev_b32", V(v_t2), 4, V(v_t2))
            g.valu("v_lshl_add_u32", V(v_dma + i), V(v_t), 8, V(v_t2))
        g.valu("v_lshlrev_b32", V(v_t2), 2, V(v_t))
        g.valu("v_xor_b32", V(v_t2), V(v_t2), lane)
        g.valu("v_and_b32", V(v_t2), 15, V(v_t2))
        g.valu("v_lshlrev_b32", V(v_t2), 4, V(v_t2))
        g.valu("v_lshl_add_u32", V(v_dmaV), V(v_t), 8, V(v_t2))

    def issue_chunk(c):
        assert role == 0
        buf = QBASE + (c % 7) * SLOT
        g.salu("s_lshl_b32", S(s_t0), S(s_qg), 11)
        g.salu("s_add_u32", "m0", S(s_t0), buf)
        g.salu("s_mov_b32", S(s_t1), c * 64)
        g.dma(v_dma + 0, SX, S(s_t1))
        g.dma(v_dma + 1, SX, S(s_t1), 1024)
        g.salu("s_add_u32", "m0", S(s_t0), buf + 8192)
        g.salu("s_mov_b32", S(s_t1), c * 262144)
        g.dma(v_dma + 2, SW, S(s_t1))
        g.dma(v_dma + 3, SW, S(s_t1), 1024)

    ITEM_SLOT = {0: 0, 1: 1, 2: 2, 3: 9, 4: 3, 5: 4, 6: 7, 7: 8, 8: 5, 9: 6, 10: 0, 11: 1, 12: 2, 13: 9, 14: 3, 15: 4}
    issued = []

    def touch_pair(p):
        if role != 1:
            return
        g.salu("s_lshl_b32", S(s_t1), S(s_qg), 13)
        g.salu("s_add_u32", S(s_t1), S(s_t1), (p & 3) * 32768)
        g.bload(v_t3, 1, v_tch, SK if p < 4 else SV, S(s_t1), 0, " nt")
        issued.append((("t", p), 1))

    def issue_item(it):
        if role != 1:
            return
        base = ITEM_SLOT[it] * SLOT
        g.salu("s_add_u32", "m0", S(s_wl), base)
        g.salu("s_add_u32", S(s_t1), S(s_wl), (it & 7) * SLOT)
        for i in range(4):
            if it < 8:
                g.dma(v_dma + i, SK, S(s_t1), 1024 * i, " nt")
            else:
                g.dma(v_dmaV, SV, S(s_t1), 1024 * i, " nt")
        issued.append((it, 4))

    def wait_item(it):
        if role != 1:
            return
        idx = [i for i, (t, _) in enumerate(issued) if t == it][0]
        g.wait(vm=min(63, sum(n for _, n in issued[idx + 1:])))

    stamp(g)
    if role == 0:
        for c in range(7):
            issue_chunk(c)
    else:
        g.salu("s_lshl_b32", S(s_r), S(s_b), 2)
        g.salu("s_add_u32", S(s_r), S(s_r), S(s_nq))
        g.salu("s_mul_i32", S(s_t0), S(s_r), 280)
        g.salu("s_mul_i32", S(s_t1), S(s_qg), 70)
        g.salu("s_add_u32", S(s_t0), S(s_t0), S(s_t1))
        g.valu("v_add_u32", V(v_t), S(s_t0), lane)
        g.valu("v_lshlrev_b32", V(v_t), 7, V(v_t))
        g.bload(v_t3, 1, v_t, SX, 0, 0)
        g.valu("v_add_u32", V(v_t), 6 * 128, V(v_t))
        g.bload(v_t3, 1, v_t, SX, 0, 0)
        g.salu("s_lshr_b32", S(s_t0), S(s_r), 2)
        g.salu("s_mul_i32", S(s_t0), S(s_t0), 80)
        g.salu("s_mul_i32", S(s_t1), S(s_qg), 20)
        g.salu("s_add_u32", S(s_t0), S(s_t0), S(s_t1))
        g.valu("v_lshrrev_b32", V(v_t), 1, lane)
        g.valu("v_min_u32", V(v_t), 19, V(v_t))
        g.valu("v_add_u32", V(v_t), S(s_t0), V(v_t))
        g.valu("v_lshlrev_b32", V(v_t), 13, V(v_t))
        g.valu("v_and_b32", V(v_t2), 1, lane)
        g.valu("v_lshl_add_u32", V(v_t), V(v_t2), 7, V(v_t))
        g.salu("s_and_b32", S(s_t0), S(s_r), 3)
        g.salu("s_lshl_b32", S(s_t0), S(s_t0), 3)
        g.salu("s_add_u32", S(s_t0), S(s_t0), S(s_ks))
        g.salu("s_lshl_b32", S(s_t0), S(s_t0), 8)
        g.bload(v_t3, 1, v_t, SW, S(s_t0), 0)
        g.valu("v_lshlrev_b32", V(v_tch), 7, lane)
        issue_item(0)
        issue_item(1)
        issue_item(2)

    g.valu("v_and_b32", V(v_t), 31, lane)
    g.valu("v_lshrrev_b32", V(v_t2), 5, lane)
    g.salu("s_lshl_b32", S(s_t0), S(s_qg), 5)
    g.valu("v_add_u32", V(v_g), S(s_t0), V(v_t))
    g.valu("v_lshrrev_b32", V(v_ex), 2, V(v_g))
    g.valu("v_and_b32", V(v_ex), 3, V(v_ex))
    g.valu("v_xor_b32", V(v_ex), V(v_ex), V(v_t2))
    g.valu("v_lshlrev_b32", V(v_g), 6, V(v_g))
    g.valu("v_lshl_add_u32", V(v_xB), V(v_ex), 4, V(v_g))
    g.valu("v_add_u32", V(v_xB), QBASE, V(v_xB))
    g.valu("v_xor_b32", V(v_xB + 1), 32, V(v_xB))
    vr_r, vr_col = v_m, v_l
    g.valu("v_lshrrev_b32", V(vr_r), 2, lane)
    g.valu("v_and_b32", V(vr_r), 3, V(vr_r))
    g.valu("v_and_b32", V(vr_col), 1, lane)
    g.valu("v_lshlrev_b32", V(vr_col), 4, V(vr_col))
    g.valu("v_and_b32", V(v_g), 2, lane)
    g.valu("v_lshl_add_u32", V(vr_col), V(v_g), 2, V(vr_col))
    g.valu("v_and_b32", V(v_g), 16, lane)
    g.valu("v_lshl_add_u32", V(vr_col), V(v_g), 1, V(vr_col))
    QT = [0] if role == 0 else [1, 2, 3]
    g.valu("v_lshl_add_u32", V(v_g), V(v_t2), 3, V(vr_r))
    g.valu("v_lshl_add_u32", V(v_g), V(v_g), 8, V(vr_col))
    g.valu("v_add_u32", V(v_g), QBASE + 8192, V(v_g))
    for i, T in enumerate(QT):
        g.valu("v_xor_b32", V(v_ex), T, V(vr_r))
        g.valu("v_lshl_add_u32", V(v_wA + i), V(v_ex), 6, V(v_g))
    g.valu("v_lshl_add_u32", V(v_g), V(v_t2), 2, V(vr_r))
    if role:
        g.valu("v_add_u32", V(v_g), 32, V(v_g))
    g.valu("v_lshl_add_u32", V(v_g), V(v_g), 8, V(vr_col))
    for t in range(4):
        g.valu("v_xor_b32", V(v_ex), t, V(vr_r))
        g.valu("v_lshl_add_u32", V(v_vA + t), V(v_ex), 6, V(v_g))
    g.valu("v_add_u32", V(v_g), 32 * role, V(v_t))
    g.valu("v_and_b32", V(v_ex), 15, V(v_g))
    g.valu("v_xor_b32", V(v_ex), V(v_ex), V(v_t2))
    g.valu("v_lshlrev_b32", V(v_g), 8, V(v_g))
    g.valu("v_lshl_add_u32", V(v_kA), V(v_ex), 4, V(v_g))
    for s in range(1, 8):
        g.valu("v_xor_b32", V(v_kA + s), s << 5, V(v_kA))

    cur_kbase = [0]
    cur_vbase = [0]

    def k_rebase(it):
        base = (ITEM_SLOT[it] * SLOT // 65536) * 65536
        if base != cur_kbase[0]:
            d = base - cur_kbase[0]
            for s in range(8):
                g.valu("v_add_u32", V(v_kA + s), d & 0xFFFFFFFF, V(v_kA + s))
            cur_kbase[0] = base

    def k_read(it, s, dst):
        off = ITEM_SLOT[it] * SLOT - cur_kbase[0]
        g.ds_read("ds_read_b128", dst + 4 * s, 4, v_kA + s, off)

    def v_rebase(it):
        base = (ITEM_SLOT[it] * SLOT // 65536) * 65536
        if base != cur_vbase[0]:
            d = base - cur_vbase[0]
            for t in range(4):
                g.valu("v_add_u32", V(v_vA + t), d & 0xFFFFFFFF, V(v_vA + t))
            cur_vbase[0] = base

    def v_read(it, u, t):
        off = ITEM_SLOT[it] * SLOT - cur_vbase[0]
        f = vF + 4 * (4 * u + t)
        for e in range(2):
            g.ds_read("ds_read_b64_tr_b16", f + 2 * e, 2, v_vA + t, off + (16 * u + 8 * e) * 256)

    nT = len(QT)
    vQacc = 128
    setsz = 8 + 8 * nT

    def qfr(setn):
        b = setn * setsz
        return dict(B=[b, b + 4], A=[[b + 8 + 4 * (nT * s + i) for i in range(nT)] for s in range(2)])

    qb = [0]

    def q_reads(c):
        f = qfr(c & 1)
        base = ((c % 7) // 4) * 65536
        if base != qb[0]:
            d = (base - qb[0]) & 0xFFFFFFFF
            for rg in [v_xB, v_xB + 1] + [v_wA + i for i in range(nT)]:
                g.valu("v_add_u32", V(rg), d, V(rg))
            qb[0] = base
        off = (c % 7) * SLOT - base
        for s in range(2):
            g.ds_read("ds_read_b128", f["B"][s], 4, v_xB + s, off)
            for i in range(nT):
                for e in range(2):
                    g.ds_read("ds_read_b64_tr_b16", f["A"][s][i] + 2 * e, 2, v_wA + i, off + (16 * s + 4 * e) * 256)

    KREG = {}
    K_ISSUE = {13: [3], 14: [4], 15: [5]}
    K_DRAIN = {}
    T_ISSUE = {}

    stamp(g)
    if role == 0:
        g.wait(vm=24)
    g.barrier()
    stamp(g)
    q_reads(0)
    NCH = 20
    for c in range(NCH):
        g.wait(lgkm=0)
        if c + 1 < NCH:
            if role == 0:
                g.wait(vm=4 * (min(c + 6, NCH - 1) - (c + 1)))
            if c in K_DRAIN:
                wait_item(K_DRAIN[c])
            g.barrier()
            if QST and c in (1, 3, 5, 7, 9, 11, 13, 15, 17):
                stamp(g)
            q_reads(c + 1)
        f = qfr(c & 1)
        for s in range(2):
            for i in range(nT):
                first = (c == 0 and s == 0)
                g.mfma32(vQacc + 16 * i, f["A"][s][i], f["B"][s], "0" if first else vQacc + 16 * i)
        if c in K_DRAIN:
            it = K_DRAIN[c]
            for s in range(8):
                k_read(it, s, KREG[it])
        if role == 0 and c + 7 < NCH:
            issue_chunk(c + 7)
        for p_ in T_ISSUE.get(c, []):
            touch_pair(p_)
        for it in K_ISSUE.get(c, []):
            issue_item(it)

    g.salu("s_lshl_b32", S(s_t0), S(s_qg), 13)
    g.salu("s_add_u32", S(s_t0), S(s_t0), QXB)
    g.valu("v_lshlrev_b32", V(v_ex), 4, lane)
    g.valu("v_add_u32", V(v_ex), S(s_t0), V(v_ex))
    tmpq = 0
    for i, T in enumerate(QT):
        for u in range(2):
            for j in range(4):
                g.valu("v_cvt_pk_bf16_f32", V(tmpq + 8 * i + 4 * u + j), V(vQacc + 16 * i + 8 * u + 2 * j),
                       V(vQacc + 16 * i + 8 * u + 2 * j + 1))
    for i, T in enumerate(QT):
        for u in range(2):
            g.ds_write("ds_write_b128", v_ex, tmpq + 8 * i + 4 * u, 4, (2 * T + u) * 1024)
    g.wait(lgkm=0)
    stamp(g)
    g.barrier()
    issue_item(6)
    issue_item(7)
    for i in range(8):
        g.ds_read("ds_read_b128", vQf + 4 * i, 4, v_ex, i * 1024)
    g.wait(lgkm=0)
    g.barrier()
    stamp(g)
    wait_item(0)
    g.barrier()
    for s in range(8):
        k_read(0, s, vF)
    issue_item(8)
    issue_item(9)

    def maxtile(j, first):
        b = vS + 16 * j
        ops = []
        if first:
            ops.append(lambda: g.valu("v_max3_f32", V(v_m), V(b), V(b + 1), V(b + 2)))
            ops.append(lambda: g.valu("v_max3_f32", V(v_l), V(b + 3), V(b + 4), V(b + 5)))
            k = 6
        else:
            k = 0
        while k + 1 < 16:
            tgt = v_m if (k // 2) % 2 == 0 else v_l
            ops.append(lambda k=k, tgt=tgt: g.valu("v_max3_f32", V(tgt), V(tgt), V(b + k), V(b + k + 1)))
            k += 2
        return ops

    for j in range(8):
        pre = j + 1
        g.wait(lgkm=0)
        wait_item(pre)
        g.barrier()
        if pre < 8:
            k_rebase(pre)
        else:
            v_rebase(8)
        src = KREG[j] if j in KREG else vF
        mx = maxtile(j - 1, j == 1) if j >= 1 else []
        for s in range(8):
            g.mfma32(vS + 16 * j, src + 4 * s, vQf + 4 * s, "0" if s == 0 else vS + 16 * j)
            if pre is not None:
                if pre < 8:
                    k_read(pre, s, vF)
                else:
                    v_read(8, s // 4, s % 4)
            if mx:
                mx.pop(0)()
        while mx:
            mx.pop(0)()
        if j <= 5:
            issue_item(j + 10)
    stamp(g)
    for op in maxtile(7, False):
        op()
    g.valu("v_max_f32", V(v_m), V(v_m), V(v_l))
    g.valu("v_mov_b32", V(v_t), V(v_m))
    g.valu("v_permlane32_swap_b32", V(v_m), V(v_t), permlane=True)
    g.valu("v_max_f32", V(v_m), V(v_m), V(v_t))
    g.valu("v_mul_f32", V(v_mc), S(s_c), V(v_m))
    g.valu("v_sub_f32", V(v_mc), 0, V(v_mc))

    def exp_ops(j, first):
        b = vS + 16 * j
        ops = []
        for r2 in range(8):
            a0, a1 = b + 2 * r2, b + 2 * r2 + 1
            ops.append(lambda a0=a0: g.valu("v_fma_f32", V(a0), V(a0), S(s_c), V(v_mc)))
            ops.append(lambda a1=a1: g.valu("v_fma_f32", V(a1), V(a1), S(s_c), V(v_mc)))
            ops.append(lambda a0=a0: g.valu("v_exp_f32", V(a0), V(a0), trans=True))
            ops.append(lambda a1=a1: g.valu("v_exp_f32", V(a1), V(a1), trans=True))
            if first and r2 == 0:
                ops.append(lambda a0=a0: g.valu("v_mov_b32", V(v_l), V(a0)))
                ops.append(lambda a1=a1: g.valu("v_mov_b32", V(v_l2), V(a1)))
            else:
                ops.append(lambda a0=a0: g.valu("v_add_f32", V(v_l), V(v_l), V(a0)))
                ops.append(lambda a1=a1: g.valu("v_add_f32", V(v_l2), V(v_l2), V(a1)))
            ops.append(lambda a0=a0, a1=a1, d=b + r2: g.valu("v_cvt_pk_bf16_f32", V(d), V(a0), V(a1)))
        return ops

    for op in exp_ops(0, True):
        op()

    stamp(g)
    for j in range(8):
        it = 8 + j
        nxt = it + 1
        g.wait(lgkm=0)
        if nxt < 16:
            wait_item(nxt)
        g.barrier()
        if nxt < 16:
            v_rebase(nxt)
        if j == 5 and role == 1:
            g.salu("s_lshr_b32", S(s_t0), S(s_r), 3)
            g.salu("s_lshl_b32", S(s_t0), S(s_t0), 3)
            g.salu("s_add_u32", S(s_t0), S(s_t0), S(s_ks))
            g.salu("s_mul_i32", S(s_t0), S(s_t0), 163840)
            g.salu("s_and_b32", S(s_t1), S(s_r), 7)
            g.salu("s_mul_i32", S(s_t1), S(s_t1), 160)
            g.valu("v_min_u32", V(v_t), 39, lane)
            g.valu("v_add_u32", V(v_t), S(s_t1), V(v_t))
            g.salu("s_mul_i32", S(s_t1), S(s_qg), 40)
            g.valu("v_add_u32", V(v_t), S(s_t1), V(v_t))
            g.valu("v_lshlrev_b32", V(v_t), 7, V(v_t))
            g.bload(v_xB, 1, v_t, SWO, S(s_t0), 0)
            issued.append((("wo", 0), 1))
        ex = exp_ops(j + 1, False) if j + 1 < 8 else []
        if j == 6:
            def fin_l():
                g.valu("v_add_f32", V(v_l), V(v_l), V(v_l2))
                g.valu("v_mov_b32", V(v_t), V(v_l))
                g.valu("v_permlane32_swap_b32", V(v_l), V(v_t), permlane=True)
                g.valu("v_add_f32", V(v_l), V(v_l), V(v_t))
            ex.append(fin_l)
        per = (len(ex) + 7) // 8
        for i in range(8):
            u, t = i // 4, i % 4
            g.mfma32(vO + 16 * t, vF + 4 * i, vS + 16 * j + 4 * u, "0" if (j == 0 and u == 0) else vO + 16 * t)
            if nxt < 16:
                v_read(nxt, u, t)
            for _ in range(per):
                if ex:
                    ex.pop(0)()
        while ex:
            ex.pop(0)()


    stamp(g)
    XW = 8704
    g.salu("s_mul_i32", S(s_t0), S(s_wave), XW)
    g.valu("v_lshlrev_b32", V(v_ex), 4, lane)
    g.valu("v_add_u32", V(v_ex), S(s_t0), V(v_ex))
    g.valu("v_lshlrev_b32", V(v_t3), 2, lane)
    g.valu("v_add_u32", V(v_t3), S(s_t0), V(v_t3))
    g.ds_write("ds_write_b32", v_t3, v_m, 1, 8192)
    g.ds_write("ds_write_b32", v_t3, v_l, 1, 8192 + 256)
    sb = vO + 32 * (1 - role)
    for qd in range(8):
        g.ds_write("ds_write_b128", v_ex, sb + 4 * qd, 4, qd * 1024)
    g.wait(lgkm=0)
    g.barrier()
    d = (4 * XW) if role == 0 else (-4 * XW) & 0xFFFFFFFF
    g.valu("v_add_u32", V(v_ex), d, V(v_ex))
    g.valu("v_add_u32", V(v_t3), d, V(v_t3))
    g.ds_read("ds_read_b32", v_t, 1, v_t3, 8192)
    g.ds_read("ds_read_b32", v_t2, 1, v_t3, 8192 + 256)
    for qd in range(8):
        g.ds_read("ds_read_b128", vS + 4 * qd, 4, v_ex, qd * 1024)
    g.valu("v_max_f32", V(v_g), V(v_m), V(v_t))
    g.valu("v_sub_f32", V(v_m), V(v_m), V(v_g))
    g.valu("v_sub_f32", V(v_t), V(v_t), V(v_g))
    g.valu("v_mul_f32", V(v_m), S(s_c), V(v_m))
    g.valu("v_mul_f32", V(v_t), S(s_c), V(v_t))
    g.valu("v_exp_f32", V(v_m), V(v_m), trans=True)
    g.valu("v_exp_f32", V(v_t), V(v_t), trans=True)
    g.valu("v_mul_f32", V(v_l), V(v_l), V(v_m))
    g.valu("v_fma_f32", V(v_l), V(v_t2), V(v_t), V(v_l))
    g.valu("v_rcp_f32", V(v_l), V(v_l), trans=True)
    g.valu("v_mul_f32", V(v_m), V(v_m), V(v_l))
    g.valu("v_mul_f32", V(v_t), V(v_t), V(v_l))
    kb = vO + 32 * role
    for r in range(32):
        g.valu("v_mul_f32", V(vS + r), V(vS + r), V(v_t))
        g.valu("v_fma_f32", V(vS + r), V(kb + r), V(v_m), V(vS + r))
    for r2 in range(16):
        g.valu("v_cvt_pk_bf16_f32", V(vS + 32 + r2), V(vS + 2 * r2), V(vS + 2 * r2 + 1))
    g.salu("s_lshl_b32", S(s_t0), S(2), 2)
    g.salu("s_add_u32", S(s_t0), S(s_t0), S(s_qg))
    g.salu("s_lshl_b32", S(s_t0), S(s_t0), 13)
    g.salu("s_add_u32", S(s_t0), S(s_t0), 4096 * role)
    g.valu("v_lshlrev_b32", V(v_oo), 4, lane)
    g.valu("v_add_u32", V(v_oo), S(s_t0), V(v_oo))
    for i in range(4):
        g.bstore(vS + 32 + 4 * i, 4, v_oo, SO, 0, 1024 * i)
    if STAMPS:
        g.wait(vm=0)
    stamp(g)
    stamp_flush(g, s_wave)
    g.text("  s_endpgm")


def k2(g, name="oproj_kernel"):
    header(g, name)
    end = ".LEND_K2"
    g.text("  s_load_dwordx2 s[46:47], s[0:1], 32")
    g.text("  s_load_dwordx2 s[54:55], s[0:1], 56")
    g.scmp("s_cmp_ge_u32", S(2), 256)
    g.misc(f"s_cbranch_scc1 {end}")
    g.valu("v_and_b32", lane, 63, V(0))
    g.valu("v_lshrrev_b32", V(v_t), 6, V(0))
    g.valu("v_readfirstlane_b32", S(s_wave), V(v_t), rdlane=True)
    g.salu("s_lshr_b32", S(s_role), S(s_wave), 2)
    g.salu("s_and_b32", S(s_qg), S(s_wave), 3)
    g.salu("s_lshr_b32", S(s_b), S(2), 5)
    g.salu("s_and_b32", S(s_h), S(2), 31)
    g.salu("s_and_b32", S(s_ks), S(2), 7)
    g.salu("s_lshr_b32", S(s_nq), S(s_h), 3)
    g.text("  s_waitcnt lgkmcnt(0)")
    g.salu("s_mov_b32", S(44), S(54))
    g.salu("s_mov_b32", S(45), S(55))
    srd(g, SO, 54, 55, 8 * 1024 * 1024)
    srd(g, SWO, 46, 47, 4096 * 640 * 2)
    g.salu("s_mov_b32", S(s_t0), PART_OFF)
    srd_off(g, SP, 54, 55, s_t0, PART_BYTES)
    g.scmp("s_cmp_lg_u32", S(s_role), 0)
    g.misc("s_cbranch_scc1 .LK2ROLE1")
    hist = list(g.hist)
    k2prog(g, 0)
    g.text(".LK2ROLE1:")
    g.hist = hist
    g.dsq = []
    k2prog(g, 1)
    g.text(f"{end}:")
    g.text("  s_endpgm")


def k2prog(g, role):
    NST[0] = 0
    stamp(g)
    vB, vAcc, vA = 0, 64, 144
    g.valu("v_lshlrev_b32", V(v_g), 4, lane)
    for hh in range(2):
        g.salu("s_lshl_b32", S(s_t0), S(s_b), 5)
        g.salu("s_add_u32", S(s_t0), S(s_t0), S(s_ks))
        g.salu("s_add_u32", S(s_t0), S(s_t0), 8 * (2 * role + hh))
        g.salu("s_lshl_b32", S(s_t0), S(s_t0), 2)
        g.salu("s_add_u32", S(s_t0), S(s_t0), S(s_qg))
        g.salu("s_lshl_b32", S(s_t0), S(s_t0), 13)
        for s in range(8):
            if s == 4:
                g.salu("s_add_u32", S(s_t0), S(s_t0), 4096)
            g.bload(vB + 4 * (8 * hh + s), 4, v_g, SO, S(s_t0), 1024 * (s & 3))
    v_wd = 204
    for i in range(5):
        g.valu("v_lshlrev_b32", V(v_t), 4, lane)
        g.valu("v_add_u32", V(v_t), 1024 * i, V(v_t))
        g.valu("v_mul_u32_u24", V(v_t2), 3277, V(v_t))
        g.valu("v_lshrrev_b32", V(v_t2), 20, V(v_t2))
        g.valu("v_mul_u32_u24", V(v_t3), 320, V(v_t2))
        g.valu("v_sub_u32", V(v_t3), V(v_t), V(v_t3))
        g.valu("v_mul_u32_u24", V(v_t2), 1280, V(v_t2))
        g.valu("v_add_u32", V(v_t2), V(v_t2), V(v_t3))
        g.salu("s_mul_i32", S(s_t0), S(s_nq), 320)
        g.salu("s_add_u32", S(s_t0), S(s_t0), (-1024 * (i & 3)) & 0xFFFFFFFF)
        g.valu("v_add_u32", V(v_wd + i), S(s_t0), V(v_t2))

    def wo_dma(st):
        g.salu("s_lshl_b32", S(s_t0), S(s_role), 1)
        g.salu("s_add_u32", S(s_t0), S(s_t0), st)
        g.salu("s_lshl_b32", S(s_t1), S(s_t0), 7)
        g.salu("s_lshl_b32", S(s_r), S(s_qg), 5)
        g.salu("s_add_u32", S(s_t1), S(s_t1), S(s_r))
        g.salu("s_mul_i32", S(s_t1), S(s_t1), 320)
        g.salu("s_lshl_b32", S(s_t0), S(s_t0), 3)
        g.salu("s_add_u32", S(s_t0), S(s_t0), S(s_ks))
        g.salu("s_lshl_b32", S(s_t0), S(s_t0), 7)
        g.salu("s_add_u32", S(s_t0), S(s_t0), S(s_r))
        g.salu("s_mul_i32", S(s_t0), S(s_t0), 1280)
        for gi in range(2):
            g.salu("s_add_u32", "m0", S(s_t1), gi * 5120)
            for i in range(4):
                g.dma(v_wd + i, SWO, S(s_t0), 1024 * i)
            g.salu("s_add_u32", "m0", S(s_t1), gi * 5120 + 4096)
            g.dma(v_wd + 4, SWO, S(s_t0), 0)
            if gi == 0:
                g.salu("s_add_u32", S(s_t0), S(s_t0), 16 * 1280)

    wo_dma(0)
    wo_dma(1)
    v_wA2 = v_wA
    g.valu("v_lshrrev_b32", V(v_t2), 5, lane)
    g.valu("v_lshrrev_b32", V(v_t), 2, lane)
    g.valu("v_and_b32", V(v_t), 3, V(v_t))
    g.valu("v_lshl_add_u32", V(v_t), V(v_t2), 3, V(v_t))
    g.valu("v_add_u32", V(v_t), 256 * role, V(v_t))
    g.valu("v_mul_u32_u24", V(v_t), 320, V(v_t))
    g.valu("v_and_b32", V(v_t2), 1, lane)
    g.valu("v_lshl_add_u32", V(v_t), V(v_t2), 4, V(v_t))
    g.valu("v_and_b32", V(v_t2), 2, lane)
    g.valu("v_lshl_add_u32", V(v_t), V(v_t2), 2, V(v_t))
    g.valu("v_and_b32", V(v_t2), 16, lane)
    g.valu("v_lshl_add_u32", V(v_wA2), V(v_t2), 1, V(v_t))
    abase = [0]

    def a_reads(k):
        if k == 8:
            g.valu("v_add_u32", V(v_wA2), 8 * 5120, V(v_wA2))
            abase[0] = 8
        for t in range(5):
            for e in range(2):
                g.ds_read("ds_read_b64_tr_b16", vA + 20 * (k % 3) + 4 * t + 2 * e, 2, v_wA2,
                          (k - abase[0]) * 5120 + t * 64 + 4 * e * 320)

    g.wait(vm=10)
    g.barrier()
    stamp(g)
    a_reads(0)
    a_reads(1)
    for k in range(16):
        if k == 6:
            g.wait(vm=0)
            g.barrier()
        if k + 2 < 16:
            a_reads(k + 2)
        for t in range(5):
            g.mfma32(vAcc + 16 * t, vA + 20 * (k % 3) + 4 * t, vB + 4 * k, "0" if k == 0 else vAcc + 16 * t)
    stamp(g)
    g.wait(lgkm=0)
    g.barrier()
    g.salu("s_mul_i32", S(s_t0), S(s_wave), 10240)
    g.valu("v_lshlrev_b32", V(v_ex), 4, lane)
    g.valu("v_add_u32", V(v_ex), S(s_t0), V(v_ex))
    sendb = vAcc + 40 * (1 - role)
    keepb = vAcc + 40 * role
    for qd in range(10):
        g.ds_write("ds_write_b128", v_ex, sendb + 4 * qd, 4, qd * 1024)
    g.wait(lgkm=0)
    g.barrier()
    d = (4 * 10240) if role == 0 else (-4 * 10240) & 0xFFFFFFFF
    g.valu("v_add_u32", V(v_ex), d, V(v_ex))
    for qd in range(10):
        g.ds_read("ds_read_b128", vB + 4 * qd, 4, v_ex, qd * 1024)
    g.salu("s_lshl_b32", S(s_t0), S(s_ks), 3)
    g.salu("s_add_u32", S(s_t0), S(s_t0), S(s_b))
    g.salu("s_lshl_b32", S(s_t0), S(s_t0), 2)
    g.salu("s_add_u32", S(s_t0), S(s_t0), S(s_nq))
    g.salu("s_lshl_b32", S(s_t0), S(s_t0), 2)
    g.salu("s_add_u32", S(s_t0), S(s_t0), S(s_qg))
    g.salu("s_mul_i32", S(s_t0), S(s_t0), 10240)
    g.salu("s_add_u32", S(s_t0), S(s_t0), role * 5120)
    g.valu("v_lshlrev_b32", V(v_g), 4, lane)
    g.valu("v_add_u32", V(v_g), S(s_t0), V(v_g))
    for r in range(40):
        g.valu("v_add_f32", V(keepb + r), V(keepb + r), V(vB + r))
    for q5 in range(5):
        for j in range(4):
            g.valu("v_cvt_pk_bf16_f32", V(vB + 40 + 4 * q5 + j), V(keepb + 8 * q5 + 2 * j), V(keepb + 8 * q5 + 2 * j + 1))
        if q5 == 4:
            g.valu("v_add_u32", V(v_g), 4096, V(v_g))
        g.bstore(vB + 40 + 4 * q5, 4, v_g, SP, 0, (q5 % 4) * 1024)
    if STAMPS:
        g.wait(vm=0)
    stamp(g)
    stamp_flush(g, s_wave)
    g.text("  s_endpgm")


def k3(g, name="reduce_kernel"):
    header(g, name)
    end = ".LEND_K3"
    SPp, SOut = 4, 8
    g.text("  s_load_dwordx2 s[36:37], s[0:1], 40")
    g.text("  s_load_dwordx2 s[44:45], s[0:1], 56")
    g.scmp("s_cmp_ge_u32", S(2), 160)
    g.misc(f"s_cbranch_scc1 {end}")
    vl, vt, vt2, vpo, voo = 100, 101, 102, 103, 104
    ln = V(vl)
    sw, sgw, st, sx, sqg, snq, sb, st0, st1 = 24, 25, 26, 27, 28, 29, 30, 31, 32
    g.valu("v_and_b32", ln, 63, V(0))
    g.valu("v_lshrrev_b32", V(vt), 6, V(0))
    g.valu("v_readfirstlane_b32", S(sw), V(vt), rdlane=True)
    g.salu("s_lshl_b32", S(sgw), S(2), 2)
    g.salu("s_add_u32", S(sgw), S(sgw), S(sw))
    g.salu("s_mul_hi_u32", S(sx), S(sgw), 0x33333334)
    g.salu("s_mul_i32", S(st0), S(sx), 5)
    g.salu("s_sub_u32", S(st), S(sgw), S(st0))
    g.salu("s_and_b32", S(sqg), S(sx), 3)
    g.salu("s_lshr_b32", S(snq), S(sx), 2)
    g.salu("s_and_b32", S(snq), S(snq), 3)
    g.salu("s_lshr_b32", S(sb), S(sx), 4)
    g.text("  s_waitcnt lgkmcnt(0)")
    g.salu("s_mov_b32", S(st0), PART_OFF)
    srd_off(g, SPp, 44, 45, st0, PART_BYTES)
    srd(g, SOut, 36, 37, 896 * 640 * 2)
    g.salu("s_mul_i32", S(st0), S(sx), 10240)
    g.salu("s_lshl_b32", S(st1), S(st), 11)
    g.salu("s_add_u32", S(st0), S(st0), S(st1))
    g.valu("v_lshlrev_b32", V(vpo), 4, ln)
    g.valu("v_add_u32", V(vpo), S(st0), V(vpo))
    g.valu("v_and_b32", V(vt), 31, ln)
    g.salu("s_lshl_b32", S(st0), S(sqg), 5)
    g.valu("v_add_u32", V(vt), S(st0), V(vt))
    g.valu("v_cmp_gt_u32", "vcc", 112, V(vt), vcc_w=True)
    g.salu("s_mul_i32", S(st0), S(sb), 112)
    g.valu("v_add_u32", V(vt), S(st0), V(vt))
    g.valu("v_mul_u32_u24", V(vt), 1280, V(vt))
    g.valu("v_lshrrev_b32", V(vt2), 5, ln)
    g.valu("v_lshl_add_u32", V(vt), V(vt2), 4, V(vt))
    g.salu("s_mul_i32", S(st0), S(snq), 320)
    g.salu("s_lshl_b32", S(st1), S(st), 6)
    g.salu("s_add_u32", S(st0), S(st0), S(st1))
    g.valu("v_add_u32", V(voo), S(st0), V(vt))
    g.misc("s_and_saveexec_b64 s[46:47], vcc")
    g.misc(f"s_cbranch_execz {end}")
    for ks in range(8):
        g.salu("s_mov_b32", S(52 + ks), ks * 128 * 10240)
    for ks in range(8):
        for u in range(2):
            g.bload(8 * ks + 4 * u, 4, vpo, SPp, S(52 + ks), u * 1024)
    for ks in range(8):
        g.wait(vm=2 * (7 - ks))
        for r in range(8):
            src = 8 * ks + r
            if ks == 0:
                g.valu("v_lshlrev_b32", V(64 + 2 * r), 16, V(src))
                g.valu("v_and_b32", V(64 + 2 * r + 1), 0xFFFF0000, V(src))
            else:
                g.valu("v_lshlrev_b32", V(80), 16, V(src))
                g.valu("v_and_b32", V(81), 0xFFFF0000, V(src))
                g.valu("v_add_f32", V(64 + 2 * r), V(64 + 2 * r), V(80))
                g.valu("v_add_f32", V(64 + 2 * r + 1), V(64 + 2 * r + 1), V(81))
    for r in range(8):
        g.valu("v_cvt_pk_bf16_f32", V(84 + r), V(64 + 2 * r), V(64 + 2 * r + 1))
    g.bstore(84, 4, voo, SOut, 0, 0)
    g.bstore(88, 4, voo, SOut, 0, 32)
    g.text(f"{end}:")
    g.text("  s_endpgm")


HEAD = """; Kernarg layout for this problem (64 bytes, ptrs only, base s[0:1]):
; @launch kernel=attn_kernel grid=(256,1,1) block=(512,1,1) lds=163840
; @launch kernel=oproj_kernel grid=(256,1,1) block=(512,1,1) lds=163840
; @launch kernel=reduce_kernel grid=(160,1,1) block=(256,1,1) lds=0
.amdgcn_target "amdgcn-amd-amdhsa--gfx950"
.text
"""


def main(out):
    parts = [HEAD]
    g = Gen()
    fused(g)
    parts.append(g.out())
    g2 = Gen()
    g2.nlabel = 100000
    k2(g2)
    parts.append(g2.out())
    g3 = Gen()
    g3.nlabel = 200000
    k3(g3)
    parts.append(g3.out())
    parts.append('.section .rodata,"a"\n.p2align 6\n')
    parts.append(kd("attn_kernel", 256, 100))
    parts.append(".p2align 6\n" + kd("oproj_kernel", 256, 100))
    parts.append(".p2align 6\n" + kd("reduce_kernel", 112))
    open(out, "w").write("".join(parts))


if __name__ == "__main__":
    if len(sys.argv) > 2 and sys.argv[2] == "stamps":
        STAMPS = True
        QST = len(sys.argv) > 3
    main(sys.argv[1] if len(sys.argv) > 1 else "standalone__gqa_block_cached__near_ridge.s")
```
